```python
import torch

def _softmax(x, axis=-1):
    return torch.softmax(x, dim=axis)
def _gelu(x):
    return torch.nn.functional.gelu(x, approximate="tanh")
def _silu(x):
    return torch.nn.functional.silu(x)
def _sigmoid(x):
    return torch.sigmoid(x)
def _layernorm(x, axis=-1, eps=1e-5):
    m = x.mean(dim=axis, keepdim=True)
    v = x.var(dim=axis, keepdim=True, unbiased=False)
    return (x - m) / torch.sqrt(v + eps)
def _scatter_add(tgt, idx, src, axis=0):
    return tgt.clone().index_add_(axis, idx, src)
def _segment_sum(src, seg, n):
    out = torch.zeros((n,) + src.shape[1:], dtype=src.dtype)
    return out.index_add_(0, seg, src)
def _pad(x, pw):
    flat = tuple(v for pair in reversed(pw) for v in pair)
    return torch.nn.functional.pad(x, flat)

kernel_name = 'concat_heads__gqa_block_cached__gqa_block_cached__near_ridge'

def setup_inputs():

    _w = (lambda a: (lambda t: t.to(torch.bfloat16) if t.is_floating_point() else t)(torch.as_tensor(a)))
    def _A_setup():
        B, Sq, D = 8, 80, 448
        Hq, Hkv, Sk, Dh = 16, 8, 1024, 256
        assert Hq % Hkv == 0, (Hq, Hkv)
        return {
            "x": _w((lambda *s: torch.randn(*s, dtype=torch.bfloat16) * 0.8)(B, Sq, D)),
            "k_cache": _w((lambda *s: torch.randn(*s, dtype=torch.bfloat16) * 0.8)(B, Hkv, Sk, Dh)),
            "v_cache": _w((lambda *s: torch.randn(*s, dtype=torch.bfloat16) * 0.05)(B, Hkv, Sk, Dh)),
            "wq": _w((lambda *s: torch.randn(*s, dtype=torch.bfloat16) * 0.8)(D, Hq * Dh) * (D ** -0.5)),
            "wo": _w((lambda *s: torch.randn(*s, dtype=torch.bfloat16) * 0.05)(Hq * Dh, D) * ((Hq * Dh) ** -0.5)),
        }
    _A_in = _A_setup()

    def _B_setup():
        B, Sq, D = 8, 80, 448
        Hq, Hkv, Sk, Dh = 16, 8, 1024, 256
        assert Hq % Hkv == 0, (Hq, Hkv)
        return {
            "x": _w((lambda *s: torch.randn(*s, dtype=torch.bfloat16) * 0.8)(B, Sq, D)),
            "k_cache": _w((lambda *s: torch.randn(*s, dtype=torch.bfloat16) * 0.8)(B, Hkv, Sk, Dh)),
            "v_cache": _w((lambda *s: torch.randn(*s, dtype=torch.bfloat16) * 0.05)(B, Hkv, Sk, Dh)),
            "wq": _w((lambda *s: torch.randn(*s, dtype=torch.bfloat16) * 0.8)(D, Hq * Dh) * (D ** -0.5)),
            "wo": _w((lambda *s: torch.randn(*s, dtype=torch.bfloat16) * 0.05)(Hq * Dh, D) * ((Hq * Dh) ** -0.5)),
        }
    _B_in = _B_setup()

    return {
        "A_x": _A_in["x"],
        "A_k_cache": _A_in["k_cache"],
        "A_v_cache": _A_in["v_cache"],
        "A_wq": _A_in["wq"],
        "A_wo": _A_in["wo"],
        "B_x": _B_in["x"],
        "B_k_cache": _B_in["k_cache"],
        "B_v_cache": _B_in["v_cache"],
        "B_wq": _B_in["wq"],
        "B_wo": _B_in["wo"],
    }

def reference(A_x, A_k_cache, A_v_cache, A_wq, A_wo, B_x, B_k_cache, B_v_cache, B_wq, B_wo):
    def _A_ref(x, k_cache, v_cache, wq, wo):
        B, Sq, D = x.shape
        Hq, Dh = 16, 256
        Hkv = k_cache.shape[1]
        rep = Hq // Hkv
        q = (lambda x, *d: x.permute(*d))((x @ wq).reshape(B, Sq, Hq, Dh), 0, 2, 1, 3)
        k = (lambda x, n, axis: torch.repeat_interleave(x, n, dim=axis))(k_cache, rep, axis=1)
        v = (lambda x, n, axis: torch.repeat_interleave(x, n, dim=axis))(v_cache, rep, axis=1)
        scores = torch.einsum("bhqd,bhkd->bhqk", q, k) * (Dh ** -0.5)
        p = _softmax(scores, axis=-1)
        o = torch.einsum("bhqk,bhkd->bhqd", p, v)
        return (lambda x, *d: x.permute(*d))(o, 0, 2, 1, 3).reshape(B, Sq, Hq * Dh) @ wo

    def _B_ref(x, k_cache, v_cache, wq, wo):
        B, Sq, D = x.shape
        Hq, Dh = 16, 256
        Hkv = k_cache.shape[1]
        rep = Hq // Hkv
        q = (lambda x, *d: x.permute(*d))((x @ wq).reshape(B, Sq, Hq, Dh), 0, 2, 1, 3)
        k = (lambda x, n, axis: torch.repeat_interleave(x, n, dim=axis))(k_cache, rep, axis=1)
        v = (lambda x, n, axis: torch.repeat_interleave(x, n, dim=axis))(v_cache, rep, axis=1)
        scores = torch.einsum("bhqd,bhkd->bhqk", q, k) * (Dh ** -0.5)
        p = _softmax(scores, axis=-1)
        o = torch.einsum("bhqk,bhkd->bhqd", p, v)
        return (lambda x, *d: x.permute(*d))(o, 0, 2, 1, 3).reshape(B, Sq, Hq * Dh) @ wo

    a = _A_ref(A_x, A_k_cache, A_v_cache, A_wq, A_wo)
    b = _B_ref(B_x, B_k_cache, B_v_cache, B_wq, B_wo)
    return torch.concatenate([a, b], axis=-1)
```

```python
NAME = "concat_heads__gqa_block_cached__gqa_block_cached__near_ridge"

class Asm:
    def __init__(self):
        self.lines = []
        self.nlabel = 0
    def __call__(self, s):
        for l in s.strip("\n").split("\n"):
            self.lines.append("    " + l.strip())
    def label(self, name):
        self.lines.append(name + ":")
    def newlabel(self, prefix="L"):
        self.nlabel += 1
        return f"{prefix}_{self.nlabel}"
    def raw(self, s):
        self.lines.append(s)
    def text(self):
        return "\n".join(self.lines) + "\n"

HEADER_COMMENT = """; Kernarg layout for this problem (104 bytes, ptrs only, base s[0:1]):
"""

def kernel_desc(name, vgpr, sgpr, accum):
    return f""".amdhsa_kernel {name}
  .amdhsa_next_free_vgpr {vgpr}
  .amdhsa_next_free_sgpr {sgpr}
  .amdhsa_accum_offset {accum}
  .amdhsa_group_segment_fixed_size 0
  .amdhsa_kernarg_size 104
  .amdhsa_user_sgpr_count 2
  .amdhsa_user_sgpr_kernarg_segment_ptr 1
  .amdhsa_system_sgpr_workgroup_id_x 1
.end_amdhsa_kernel
"""

def kernel_start(name):
    return f""".globl {name}
.p2align 8
.type {name},@function
{name}:
"""
```

```python
import re

_RNG = re.compile(r"^([vsa])\[(\d+):(\d+)\]$")
_ONE = re.compile(r"^([vsa])(\d+)$")

def regs(tok):
    tok = tok.strip()
    neg = tok.startswith("-")
    if neg: tok = tok[1:]
    if tok.startswith("abs(") or tok.startswith("|"):
        tok = tok.strip("abs()|")
    m = _RNG.match(tok)
    if m: return [(m.group(1), i) for i in range(int(m.group(2)), int(m.group(3)) + 1)]
    m = _ONE.match(tok)
    if m: return [(m.group(1), int(m.group(2)))]
    if tok == "vcc": return [("s", 106), ("s", 107)]
    if tok == "m0": return [("s", 124)]
    if tok == "exec": return [("s", 126), ("s", 127)]
    return []

TRANS = ("v_exp_f32", "v_log_f32", "v_rcp_f32", "v_rsq_f32", "v_sqrt_f32", "v_sin_f32", "v_cos_f32")

class Ins:
    __slots__ = ("text", "op", "kind", "defs", "uses", "cuse", "abuse", "ws", "wide", "tag")
    def __init__(self, text):
        self.text = text
        body = text.split(";")[0].strip()
        parts = body.split(None, 1)
        self.op = op = parts[0]
        rest = parts[1] if len(parts) > 1 else ""
        ops = [o.strip() for o in rest.split(",")] if rest else []
        if ops:
            last = ops[-1].split()
            ops[-1] = last[0] if last else ""
            mods = last[1:]
        else:
            mods = []
        self.defs = []; self.uses = []; self.cuse = []; self.abuse = []
        self.ws = 1; self.wide = False; self.tag = None
        R = [regs(o) for o in ops]
        if op.startswith("v_mfma"):
            self.kind = "mfma"; self.defs = R[0]; self.abuse = R[1] + R[2]; self.cuse = R[3]; self.uses = R[1] + R[2] + R[3]
        elif op.startswith("v_"):
            self.kind = "trans" if op.split("_e")[0] in TRANS or op in TRANS else "valu"
            if op.startswith("v_permlane") and "swap" in op:
                self.defs = R[0] + R[1]; self.uses = R[0] + R[1]; self.kind = "perml"
            elif op.startswith("v_readfirstlane") or op.startswith("v_readlane"):
                self.defs = R[0]; self.uses = sum(R[1:], []); self.kind = "rdlane"
            elif op.startswith("v_add_co") or op.startswith("v_addc_co"):
                self.defs = R[0] + R[1]; self.uses = sum(R[2:], [])
            else:
                self.defs = R[0]; self.uses = sum(R[1:], [])
                if op.startswith("v_fmac") or op.startswith("v_dot2c"): self.uses += R[0]
                if op.startswith("v_cndmask") and len(ops) == 3: self.uses += regs("vcc")
            if "dpp" in op or any(m.startswith(("row_", "quad_perm", "wave_")) for m in mods): self.kind = "dpp"
        elif op.startswith("ds_read") or op.startswith("ds_bpermute") or op.startswith("ds_swizzle"):
            self.kind = "dsr"; self.defs = R[0]; self.uses = sum(R[1:], [])
        elif op.startswith("ds_write"):
            self.kind = "dsw"; self.uses = sum(R, [])
        elif op.startswith("buffer_load") or op.startswith("global_load"):
            if "lds" in mods or "_lds_" in op:
                self.kind = "dma"; self.uses = sum(R, []) + regs("m0")
            else:
                self.kind = "vld"; self.defs = R[0]; self.uses = sum(R[1:], [])
        elif op.startswith("buffer_store"):
            self.kind = "vst"; self.uses = sum(R, []); self.wide = "x4" in op or "x3" in op
            self.cuse = R[0]
        elif op.startswith("global_store"):
            self.kind = "vst"; self.uses = sum(R, []); self.wide = "x4" in op or "x3" in op
            self.cuse = R[1]
        elif op.startswith("buffer_wbl2") or op.startswith("buffer_inv"):
            self.kind = "vst"
        elif op.startswith("global_atomic") or op.startswith("buffer_atomic"):
            self.kind = "vst"; self.uses = sum(R, [])
        elif op == "s_nop":
            self.kind = "nop"; self.ws = int(ops[0], 0) + 1
        elif op.startswith("s_load") or op.startswith("s_memrealtime") or op.startswith("s_memtime"):
            self.kind = "smem"; self.defs = R[0]; self.uses = sum(R[1:], [])
        elif op.startswith(("s_cmp", "s_waitcnt", "s_barrier", "s_branch", "s_cbranch", "s_endpgm", "s_setprio", "s_bitcmp", "s_sleep")):
            self.kind = "sctl"; self.uses = sum(R, [])
        elif op.startswith("s_"):
            self.kind = "salu"; self.defs = R[0]; self.uses = sum(R[1:], [])
            if "saveexec" in op: self.defs = self.defs + regs("exec")
        else:
            raise ValueError("unknown op " + text)

class Emitter:
    def __init__(self):
        self.items = []
        self.vm = []
        self.lg = []
        self.smem_out = False
    def __call__(self, text, tag=None):
        for l in text.strip("\n").split("\n"):
            l = l.strip()
            if not l or l.startswith(";"): continue
            i = Ins(l); i.tag = tag
            self.items.append(i)
            if i.kind in ("dma", "vld", "vst"): self.vm.append(tag)
            elif i.kind in ("dsr", "dsw"): self.lg.append(tag)
            elif i.kind == "smem": self.smem_out = True
    def label(self, name): self.items.append(name + ":")
    def comment(self, s): self.items.append("; " + s)
    def _count_after(self, lst, tags):
        if not isinstance(tags, (list, tuple, set)): tags = [tags]
        idx = -1
        for k, t in enumerate(lst):
            if t in tags: idx = k
        if idx < 0: return None
        return len(lst) - 1 - idx
    def wait(self, vm=None, lg=None):
        parts = []
        if vm is not None:
            n = 0 if vm == "all" else self._count_after(self.vm, vm)
            if n is not None and self.vm:
                assert n <= 63, n
                parts.append(f"vmcnt({n})"); self.vm = self.vm[len(self.vm) - n:] if n else []
        if lg is not None:
            n = 0 if lg == "all" else self._count_after(self.lg, lg)
            if n is not None and (self.lg or self.smem_out):
                if self.smem_out: n = 0
                if n > 15:
                    n = 15
                parts.append(f"lgkmcnt({n})"); self.lg = self.lg[len(self.lg) - n:] if n else []
                if n == 0: self.smem_out = False
        if parts: self("s_waitcnt " + " ".join(parts))
    def check_vm_cap(self):
        assert len(self.vm) <= 63, len(self.vm)
    def finalize(self):
        out = []
        pos = 0
        NEG = -1000
        lastvalu = {}; lasttrans = {}; lastD = {}; lastC = {}; lastwide = {}; lastsv = {}; lastm0 = NEG
        nn = 0
        for it in self.items:
            if isinstance(it, str):
                out.append(it); continue
            need = 0
            def req(p, n):
                nonlocal need
                if p is not None and p > NEG:
                    d = pos - p - 1
                    if d < n: need = max(need, n - d)
            k = it.kind
            isvalu = k in ("valu", "trans", "perml", "rdlane", "dpp")
            if k == "mfma":
                for r in it.uses:
                    req(lastvalu.get(r), 2)
                for r in it.abuse:
                    req(lastD.get(r, (None,))[0], 8)
                for r in it.cuse:
                    e = lastD.get(r)
                    if e and e[1] != tuple(it.cuse): req(e[0], 6)
            else:
                for r in it.uses + it.defs:
                    e = lastD.get(r)
                    if e: req(e[0], 8)
                if isvalu:
                    for r in it.defs:
                        req(lastC.get(r), 3)
                        req(lastwide.get(r), 2)
                    for r in it.uses:
                        if k != "trans" or True: req(lasttrans.get(r), 1)
                        if r[0] == "s": req(lastsv.get(r), 2)
                    if k in ("perml", "dpp"):
                        for r in it.uses: req(lastvalu.get(r), 2)
                    if k == "rdlane":
                        for r in it.uses: req(lastvalu.get(r), 1)
                else:
                    for r in it.defs: req(lastwide.get(r), 1)
                if k in ("dma", "vld", "vst"):
                    for r in it.uses:
                        if r[0] == "s": req(lastsv.get(r), 5)
                if k in ("salu", "sctl", "smem"):
                    for r in it.uses:
                        if r[0] == "s": req(lastsv.get(r), 3)
                if k == "dma": req(lastm0, 1)
            while need > 0:
                n = min(need, 16)
                out.append(Ins(f"s_nop {n-1}")); pos += n; need -= n; nn += 1
            out.append(it)
            if k == "mfma":
                for r in it.defs: lastD[r] = (pos, tuple(it.defs))
                for r in it.cuse: lastC[r] = pos
            elif isvalu:
                for r in it.defs:
                    if r[0] == "s": lastsv[r] = pos
                    else:
                        lastvalu[r] = pos
                        if k == "trans": lasttrans[r] = pos
                        lastD.pop(r, None)
            if k == "vst" and it.wide:
                for r in it.cuse: lastwide[r] = pos
            if k == "salu" and ("s", 124) in it.defs: lastm0 = pos
            pos += it.ws
        self.nnops = nn
        return "\n".join(("    " + o.text) if isinstance(o, Ins) else o for o in out) + "\n"
```

```python
import sys, struct, math
from emit import Emitter
from asmlib import NAME, HEADER_COMMENT, kernel_desc, kernel_start

XB = 81920
WAREA = 10240
def f32bits(x): return struct.unpack("<I", struct.pack("<f", x))[0]

class Cfg:
    stamps = False
    dump = None
    kv_pol = " nt"
    w_pol = ""
    st_pol = ""
    rd_pol = ""
    fill_exp = True
    prio = False

def vr(a, n=4): return f"v[{a}:{a+n-1}]"

def gen_main(cfg):
    e = Emitter()
    stamp_regs = []
    def stamp():
        if cfg.stamps:
            r = 60 + 2 * len(stamp_regs)
            stamp_regs.append(r)
            e(f"s_memrealtime s[{r}:{r+1}]")
    e("s_cmp_ge_u32 s2, 256")
    e("s_cbranch_scc1 L_main_end")
    stamp()
    e("""
    s_and_b32 s3, s2, 7
    s_lshr_b32 s4, s2, 3
    s_lshr_b32 s5, s4, 4
    s_lshr_b32 s6, s4, 1
    s_and_b32 s6, s6, 7
    s_and_b32 s7, s4, 1
    s_lshl_b32 s8, s3, 1
    s_add_u32 s8, s8, s7
    s_mul_i32 s49, s5, 40
    s_add_u32 s50, s0, s49
    s_addc_u32 s51, s1, 0
    s_load_dwordx8 s[12:19], s[50:51], 0
    s_load_dwordx2 s[20:21], s[50:51], 32
    s_load_dwordx2 s[22:23], s[0:1], 96
    v_lshrrev_b32 v26, 6, v0
    v_and_b32 v1, 63, v0
    v_readfirstlane_b32 s9, v26
    v_lshlrev_b32 v0, 4, v1
    s_and_b32 s10, s9, 3
    s_lshr_b32 s11, s9, 2
    s_mul_i32 s48, s9, 10240
    """)
    e("""
    v_lshrrev_b32 v26, 4, v1
    v_and_b32 v27, 15, v1
    v_lshrrev_b32 v28, 3, v1
    v_and_b32 v29, 7, v1
    """)
    e("""
    v_xor_b32 v30, s9, v1
    v_lshlrev_b32 v30, 4, v30
    v_xor_b32 v31, 0x80, v30
    """)
    e("""
    s_lshl_b32 s49, s11, 1
    v_xor_b32 v23, s49, v27
    v_lshlrev_b32 v23, 3, v23
    v_lshl_add_u32 v23, v26, 16, v23
    """)
    e("""
    v_lshrrev_b32 v24, 1, v28
    v_and_b32 v24, 1, v24
    v_and_b32 v25, 4, v28
    v_or_b32 v24, v24, v25
    v_xor_b32 v24, v24, v29
    v_lshlrev_b32 v24, 4, v24
    v_lshl_add_u32 v2, v28, 9, v24
    """)
    e("""
    v_and_b32 v24, 6, v28
    v_xor_b32 v24, v24, v29
    v_lshlrev_b32 v24, 4, v24
    v_lshl_add_u32 v3, v28, 9, v24
    v_mul_u32_u24 v4, 896, v28
    v_add_u32 v4, v4, v24
    """)
    e.wait(lg="all")
    e(f"""
    s_mul_i32 s49, s6, 71680
    s_add_u32 s24, s12, s49
    s_addc_u32 s25, s13, 0
    s_mov_b32 s26, 71680
    s_mov_b32 s27, 0x00020000
    s_mul_i32 s49, s11, {224*8192}
    s_lshl_b32 s50, s8, 9
    s_add_u32 s49, s49, s50
    s_lshl_b32 s50, s10, 7
    s_add_u32 s49, s49, s50
    s_add_u32 s28, s18, s49
    s_addc_u32 s29, s19, 0
    s_mov_b32 s30, {223*8192+128}
    s_mov_b32 s31, 0x00020000
    """)
    e(f"s_mul_i32 s52, s9, 896")
    e(f"s_mul_i32 s53, s9, 5120")
    e(f"s_add_u32 s53, s53, {XB}")
    for k in range(10):
        e(f"s_add_u32 m0, s53, {(40960 if k & 1 else 0) + (k >> 1) * 1024}")
        e(f"s_add_u32 s49, s52, {k * 7168}")
        e(f"buffer_load_dwordx4 v{31 if k & 1 else 30}, s[24:27], s49 offen{cfg.w_pol} lds", tag="x")
    WQR = 112
    def wq_issue(s):
        base = WQR + (s % 6) * 16
        for i in range(8):
            e(f"s_mov_b32 s{49 + (i & 1)}, {(32 * s + i) * 8192}")
            e(f"buffer_load_dwordx2 {vr(base + 2 * i, 2)}, v23, s[28:31], s{49 + (i & 1)} offen{cfg.w_pol}", tag=f"wq{s}")
    for s in range(4): wq_issue(s)
    e(f"""
    s_lshl_b32 s49, s6, 3
    s_add_u32 s49, s49, s3
    s_lshl_b32 s49, s49, 19
    s_lshl_b32 s50, s9, 16
    s_add_u32 s50, s50, s49
    s_add_u32 s32, s14, s50
    s_addc_u32 s33, s15, 0
    s_mov_b32 s34, 65536
    s_mov_b32 s35, 0x00020000
    s_lshl_b32 s50, s11, 18
    s_add_u32 s50, s50, s49
    s_lshl_b32 s51, s10, 7
    s_add_u32 s50, s50, s51
    s_add_u32 s36, s16, s50
    s_addc_u32 s37, s17, 0
    s_mov_b32 s38, 261760
    s_mov_b32 s39, 0x00020000
    s_mul_i32 s50, s8, 229376
    s_lshl_b32 s51, s9, 7
    s_add_u32 s50, s50, s51
    s_add_u32 s40, s20, s50
    s_addc_u32 s41, s21, 0
    s_sub_u32 s42, 229376, s51
    s_mov_b32 s43, 0x00020000
    s_lshl_b32 s50, s5, 3
    s_add_u32 s50, s50, s6
    s_lshl_b32 s50, s50, 4
    s_add_u32 s50, s50, s8
    s_mul_i32 s50, s50, 71680
    s_add_u32 s50, s50, s48
    s_add_u32 s44, s22, s50
    s_addc_u32 s45, s23, 0
    s_mov_b32 s46, 10240
    s_mov_b32 s47, 0x00020000
    """)
    blocks = []
    for c in range(4):
        for dp in range(4):
            for rg in range(4):
                blocks.append(("K", c * 16384 + rg * 4096 + dp * 128))
    for c in range(4):
        for j in range(4):
            for rg in range(4):
                blocks.append(("V", (128 * j + 32 * c + 8 * rg) * 512))
    for wp in range(8):
        d0 = 64 * (wp & 3) + 32 * (wp >> 2)
        for rg in range(4):
            blocks.append(("W", (d0 + 8 * rg) * 896))
    NB = len(blocks)
    def slot(i): return i if i < 10 else (i - 10) % 8
    def prev(i): return -1 if i < 10 else (i - 10 if i < 18 else i - 8)
    st = {"next": 0, "consumed": -1}
    def dma_list():
        out = []
        while st["next"] < NB and prev(st["next"]) <= st["consumed"]:
            i = st["next"]; st["next"] += 1
            kind, off = blocks[i]
            srd, vo, pol = {"K": (32, 2, cfg.kv_pol), "V": (36, 3, cfg.kv_pol), "W": (40, 4, cfg.w_pol)}[kind]
            out.append((i, [f"s_add_u32 m0, s48, {slot(i) * 1024}",
                            f"s_mov_b32 s49, {off}",
                            f"buffer_load_dwordx4 v{vo}, s[{srd}:{srd+3}], s49 offen{pol} lds"]))
        return out
    def dma_emit(g):
        i, lines = g
        e(lines[0]); e(lines[1]); e(lines[2], tag=f"blk{i}")
    for g in dma_list(): dma_emit(g)
    wq_issue(4)
    e("""
    v_and_b32 v24, 7, v27
    v_lshrrev_b32 v25, 1, v24
    v_and_b32 v25, 1, v25
    v_and_b32 v5, 4, v24
    v_or_b32 v25, v25, v5
    v_lshlrev_b32 v5, 1, v26
    v_xor_b32 v5, v5, v25
    v_lshlrev_b32 v5, 4, v5
    v_lshl_add_u32 v5, v24, 7, v5
    v_lshrrev_b32 v24, 3, v27
    v_lshl_add_u32 v5, v24, 10, v5
    v_add_u32 v5, s48, v5
    v_xor_b32 v6, 16, v5
    """)
    e("""
    v_lshrrev_b32 v24, 2, v27
    v_and_b32 v25, 1, v26
    v_lshl_add_u32 v24, v25, 2, v24
    v_lshrrev_b32 v25, 1, v24
    v_xor_b32 v25, s11, v25
    v_xor_b32 v25, s11, v25
    v_lshlrev_b32 v7, 5, v25
    v_lshl_add_u32 v7, v24, 7, v7
    v_and_b32 v25, 3, v27
    v_lshl_add_u32 v7, v25, 3, v7
    v_lshrrev_b32 v25, 1, v26
    v_lshl_add_u32 v7, v25, 10, v7
    v_add_u32 v7, s48, v7
    s_lshl_b32 s49, s11, 6
    v_xor_b32 v7, s49, v7
    v_xor_b32 v8, 32, v7
    v_xor_b32 v9, 64, v7
    v_xor_b32 v10, 0x60, v7
    """)
    e(f"""
    v_add_u32 v11, {XB}, v0
    v_add_u32 v12, {XB + 40960}, v0
    s_mul_i32 s49, s9, 5120
    v_add_u32 v13, s49, v11
    v_add_u32 v14, s48, v11
    s_xor_b32 s49, s9, 4
    s_mul_i32 s49, s49, 10240
    v_add_u32 v15, s49, v11
    s_mov_b32 s52, 0x05040100
    s_mov_b32 s53, 0x07060302
    s_mov_b32 s54, {f32bits(math.log2(math.e) / 16.0):#x}
    s_mov_b32 s55, 0xffff0000
    """)
    e("s_mul_i32 s49, s11, 28")
    e("v_add_u32 v24, s49, v26")
    e("v_mul_u32_u24 v25, 5120, v27")
    e(f"v_add_u32 v25, {XB}, v25")
    for s in range(7):
        e(f"v_add_u32 v{16+s}, {4*s}, v24")
        e(f"v_xor_b32 v{16+s}, v{16+s}, v27")
        e(f"v_lshl_add_u32 v{16+s}, v{16+s}, 4, v25")
    e.wait(vm="x")
    e("s_barrier")
    stamp()
    wq_issue(5)
    QACC = 32
    def qacc(j, t): return QACC + (j * 5 + t) * 4
    AF = 208
    XF = [240, 244, 248, 252, 28]
    def perms(s):
        base = WQR + (s % 6) * 16
        out = []
        for j in range(4):
            for p in range(4):
                lo = base + 2 * (2 * p) + (j >> 1); hi = base + 2 * (2 * p + 1) + (j >> 1)
                out.append(f"v_perm_b32 v{AF + (s % 2) * 16 + j * 4 + p}, v{hi}, v{lo}, s{52 + (j & 1)}")
        return out
    for t in range(5):
        e(f"ds_read_b128 {vr(XF[t])}, v16 offset:{t*1024}", tag=f"xf0_{t}")
    e.wait(vm="wq0")
    for p in perms(0): e(p)
    for s in range(7):
        fill = []
        if s + 1 < 7:
            fill = perms(s + 1)
        for t in range(5):
            e.wait(lg=f"xf{s}_{t}")
            for j in range(4):
                c = "0" if s == 0 else vr(qacc(j, t))
                e(f"v_mfma_f32_16x16x32_bf16 {vr(qacc(j,t))}, {vr(AF + (s%2)*16 + j*4)}, {vr(XF[t])}, {c}")
                if t == 0 and j == 0:
                    if s == 0: wq_issue(6)
                    if s + 1 < 7: e.wait(vm=f"wq{s+1}")
                elif fill:
                    e(fill.pop(0))
            if s + 1 < 7:
                e(f"ds_read_b128 {vr(XF[t])}, v{16+s+1} offset:{t*1024}", tag=f"xf{s+1}_{t}")
        for f in fill: e(f)
    stamp()
    e("v_lshlrev_b32 v24, 3, v1")
    e("s_xor_b32 s49, s9, 4")
    e("s_mul_i32 s49, s49, 10240")
    e(f"s_add_u32 s49, s49, {XB}")
    e("v_add_u32 v25, s49, v24")
    e(f"s_add_u32 s49, s48, {XB}")
    e("v_add_u32 v24, s49, v24")
    e("s_barrier")
    idx = [(j, t) for t in range(5) for j in range(4)]
    for k in range(0, 20, 2):
        a, b = idx[k], idx[k + 1]
        e(f"ds_write2st64_b64 v25, {vr(qacc(*a)+2, 2)}, {vr(qacc(*b)+2, 2)} offset0:{k} offset1:{k+1}", tag="qxw")
    e.wait(lg="all")
    e("s_barrier")
    RX = 112
    for k in range(0, 20, 2):
        e(f"ds_read2st64_b64 {vr(RX + 2*k)}, v24 offset0:{k} offset1:{k+1}", tag=f"qxr{k}")
    QF = 192
    for t in range(5):
        e.wait(lg=f"qxr{4*t+2}")
        for j in range(4):
            k = 4 * t + j
            e(f"v_add_f32 v{qacc(j,t)}, v{qacc(j,t)}, v{RX+2*k}")
            e(f"v_add_f32 v{qacc(j,t)+1}, v{qacc(j,t)+1}, v{RX+2*k+1}")
        e(f"v_cvt_pk_bf16_f32 v{QF+4*t}, v{qacc(0,t)}, v{qacc(1,t)}")
        e(f"v_cvt_pk_bf16_f32 v{QF+4*t+1}, v{qacc(2,t)}, v{qacc(3,t)}")
        e(f"v_cvt_pk_bf16_f32 v{QF+4*t+2}, v{qacc(0,t)+1}, v{qacc(1,t)+1}")
        e(f"v_cvt_pk_bf16_f32 v{QF+4*t+3}, v{qacc(2,t)+1}, v{qacc(3,t)+1}")
    for t in range(5):
        e(f"ds_write_b128 v14, {vr(QF+4*t)} offset:{t*1024}", tag="qw")
    if cfg.dump == "q":
        dump(e, [QF + 4 * t for t in range(5)])
    e.wait(lg="all")
    e("s_barrier")
    stamp()
    SR = 32
    def sreg(c, t): return SR + (c * 5 + t) * 4
    def acc1(p, u, t): return 112 + p * 40 + (u * 5 + t) * 4
    KF = 192
    QS = [224, 228, 232, 236, 240, 244, 248, 252, 24, 28]
    MX = 16
    def qfrag_addr(dp, ab, t):
        w = dp + 4 * ab
        off = w * 10240 + t * 1024
        return ("v11", off) if off < 40960 else ("v12", off - 40960)
    units = [(G, ab) for G in range(16) for ab in range(2)]
    def kread(G):
        e.wait(vm=f"blk{4*G+3}")
        for u in range(2):
            for ab in range(2):
                e(f"ds_read_b128 {vr(KF + (G%2)*16 + (u*2+ab)*4)}, v{5+ab} offset:{slot(4*G+2*u)*1024}", tag=f"kf{G}")
    def qread(k, t):
        G, ab = units[k]
        a, off = qfrag_addr(G % 4, ab, t)
        e(f"ds_read_b128 {vr(QS[(k%2)*5+t])}, {a} offset:{off}", tag=f"qf{k}_{t}")
    kread(0)
    for t in range(5): qread(0, t)
    for t in range(5): qread(1, t)
    fill = []
    for k, (G, ab) in enumerate(units):
        c, dp = G // 4, G % 4
        p = c % 2
        dmas = []
        if ab == 0 and G + 1 < 16:
            kread(G + 1)
        if ab == 1:
            pass
        for t in range(5):
            e.wait(lg=[f"qf{k}_{t}", f"kf{G}"])
            for u in range(2):
                cc = "0" if (dp == 0 and ab == 0) else vr(acc1(p, u, t))
                e(f"v_mfma_f32_16x16x32_bf16 {vr(acc1(p,u,t))}, {vr(KF + (G%2)*16 + (u*2+ab)*4)}, {vr(QS[(k%2)*5+t])}, {cc}")
                if fill and not (dp == 0 and ab == 0 and t < 4):
                    e(fill.pop(0))
                    if fill: e(fill.pop(0))
            if k + 2 < len(units): qread(k + 2, t)
            if ab == 1 and t == 0 or (k == 0 and t == 0):
                gdone = G + 1 if (ab == 1 and G + 1 < 16) else G
                e.wait(lg=f"kf{gdone}")
                st["consumed"] = 4 * gdone + 3
                dmas = dma_list()
            if dmas: dma_emit(dmas.pop(0))
        for g in dmas: dma_emit(g)
        if dp == 3 and ab == 1:
            for f in fill: e(f)
            fill = []
            for t in range(5):
                for u in range(2):
                    a = acc1(p, u, t)
                    if c == 0 and u == 0:
                        fill.append(f"v_max_f32 v{MX+t}, v{a}, v{a+1}")
                    else:
                        fill.append(f"v_max3_f32 v{MX+t}, v{a}, v{a+1}, v{MX+t}")
                    fill.append(f"v_cvt_pk_bf16_f32 v{sreg(c,t)+2*u}, v{a}, v{a+1}")
                    fill.append(f"v_max3_f32 v{MX+t}, v{a+2}, v{a+3}, v{MX+t}")
                    fill.append(f"v_cvt_pk_bf16_f32 v{sreg(c,t)+2*u+1}, v{a+2}, v{a+3}")
    for f in fill: e(f)
    stamp()
    if cfg.dump == "s":
        dump(e, [SR + 4 * i for i in range(20)])
    def xwave_reduce(R, op, area_off, tagp):
        for t in range(5):
            e(f"v_mov_b32 v{244+t}, v{R+t}")
        for t in range(5):
            e(f"v_permlane32_swap_b32 v{R+t}, v{244+t}")
        for t in range(5):
            e(f"{op} v{R+t}, v{R+t}, v{244+t}")
            e(f"v_mov_b32 v{244+t}, v{R+t}")
        for t in range(5):
            e(f"v_permlane16_swap_b32 v{R+t}, v{244+t}")
        for t in range(5):
            e(f"{op} v{244+t}, v{R+t}, v{244+t}")
        e("v_and_b32 v250, 15, v1")
        e("v_lshlrev_b32 v250, 5, v250")
        e(f"v_add_u32 v251, s48, v250")
        e(f"ds_write_b128 v251, v[244:247] offset:{area_off}", tag=tagp + "w")
        e(f"ds_write_b32 v251, v248 offset:{area_off+16}", tag=tagp + "w")
    def xwave_gather(R, op, area_off, tagp, T):
        e("v_and_b32 v250, 15, v1")
        e("v_lshlrev_b32 v250, 5, v250")
        e("v_add_u32 v251, 40960, v250")
        for w in range(8):
            a, off = ("v250", w * 10240 + area_off) if w < 4 else ("v251", (w - 4) * 10240 + area_off)
            e(f"ds_read_b128 {vr(T + 4*w)}, {a} offset:{off}", tag=f"{tagp}r{w}")
            e(f"ds_read_b32 v{T+32+w}, {a} offset:{off+16}", tag=f"{tagp}r{w}")
        e.wait(lg="all")
        for t in range(5):
            src = [(T + 4 * w + t) if t < 4 else (T + 32 + w) for w in range(8)]
            e(f"{op} v{R+t}, v{src[0]}, v{src[1]}")
            for w in range(2, 8):
                e(f"{op} v{R+t}, v{R+t}, v{src[w]}")
    xwave_reduce(MX, "v_max_f32", 8192, "mx")
    e.wait(lg="all")
    e("s_barrier")
    xwave_gather(MX, "v_max_f32", 8192, "mx", 112)
    for t in range(5):
        e(f"v_cvt_pk_bf16_f32 v{MX+t}, v{MX+t}, v{MX+t}")
        e(f"v_and_b32 v{MX+t}, s55, v{MX+t}")
        e(f"v_mul_f32 v{MX+t}, s54, v{MX+t}")
        e(f"v_sub_f32 v{MX+t}, 0, v{MX+t}")
    LS = 21
    stamp()
    def exp_ops(c):
        out = []
        n = 0
        for t in range(5):
            for r in range(4):
                s = sreg(c, t) + r
                ta = 244 + 2 * (n % 4); tb = ta + 1; n += 1
                out += [f"v_lshlrev_b32 v{ta}, 16, v{s}",
                        f"v_and_b32 v{tb}, s55, v{s}",
                        f"v_fma_f32 v{ta}, v{ta}, s54, v{MX+t}",
                        f"v_fma_f32 v{tb}, v{tb}, s54, v{MX+t}",
                        f"v_exp_f32 v{ta}, v{ta}",
                        f"v_exp_f32 v{tb}, v{tb}"]
                if c == 0 and r == 0:
                    out += [f"v_add_f32 v{LS+t}, v{ta}, v{tb}"]
                else:
                    out += [f"v_add_f32 v{LS+t}, v{LS+t}, v{ta}", f"v_add_f32 v{LS+t}, v{LS+t}, v{tb}"]
                out += [f"v_cvt_pk_bf16_f32 v{s}, v{ta}, v{tb}"]
        return out
    ACC = 112
    def acc2(t4, t): return ACC + (t4 * 5 + t) * 4
    VF = 192; PF = 224
    def aread(gi):
        e.wait(vm=f"blk{4*gi+3}")
        for t4 in range(4):
            for hh in range(2):
                e(f"ds_read_b64_tr_b16 {vr(VF + (gi%2)*16 + t4*4 + hh*2, 2)}, v{7+t4} offset:{slot(4*gi+2*hh)*1024}", tag=f"af{gi}")
    def gemm_kstep(gi, first, bnext, fill, nfill, last_a):
        dmas = []
        if not last_a: aread(gi + 1)
        for t in range(5):
            e.wait(lg=[f"bf{gi}_{t}", f"af{gi}"])
            for t4 in range(4):
                cc = "0" if first else vr(acc2(t4, t))
                e(f"v_mfma_f32_16x16x32_bf16 {vr(acc2(t4,t))}, {vr(VF + (gi%2)*16 + t4*4)}, {vr(PF+4*t)}, {cc}")
                for _ in range(nfill):
                    if fill: e(fill.pop(0))
                if t >= 2 and dmas: dma_emit(dmas.pop(0))
            if bnext: bnext(t)
            if t == 1:
                gdone = gi if last_a else gi + 1
                e.wait(lg=f"af{gdone}")
                st["consumed"] = 4 * gdone + 3
                dmas = dma_list()
        for g in dmas: dma_emit(g)
    e("s_mul_i32 s49, s11, 20480")
    e("v_add_u32 v26, s49, v11")
    def pread(c, j, t):
        gi = 16 + 4 * c + j
        e(f"ds_read_b128 {vr(PF+4*t)}, v26 offset:{(c&1)*40960 + j*5120 + t*1024}", tag=f"bf{gi}_{t}")
    for f in exp_ops(0): e(f)
    aread(16)
    for c in range(4):
        for t in range(5):
            e(f"ds_write_b128 v13, {vr(sreg(c,t))} offset:{(c&1)*40960 + t*1024}", tag="pw")
        e.wait(lg="pw")
        e("s_barrier")
        if c == 3:
            xwave_reduce(LS, "v_add_f32", 9216, "ls")
        for t in range(5): pread(c, 0, t)
        fill = exp_ops(c + 1) if c < 3 else []
        if not cfg.fill_exp:
            pre, fill = fill, []
        for j in range(4):
            gi = 16 + 4 * c + j
            bn = (lambda t, c=c, j=j: pread(c, j + 1, t)) if j < 3 else None
            gemm_kstep(gi, c == 0 and j == 0, bn, fill, 3, last_a=(gi == 31))
        for f in fill: e(f)
        if not cfg.fill_exp:
            for f in pre: e(f)
    stamp()
    e.wait(lg="all")
    e("s_barrier")
    for t4 in (2, 3):
        for t in range(5):
            e(f"ds_write_b128 v15, {vr(acc2(t4,t))} offset:{((t4-2)*5+t)*1024}", tag="oxw")
    e.wait(lg="all")
    e("s_barrier")
    RO = 32
    for k in range(10):
        e(f"ds_read_b128 {vr(RO+4*k)}, v14 offset:{k*1024}", tag=f"oxr{k}")
    xwave_gather(LS, "v_add_f32", 9216, "ls", 72)
    for t in range(5):
        e(f"v_rcp_f32 v{LS+t}, v{LS+t}")
    OFR = 72
    for t in range(5):
        for t4 in range(2):
            a = acc2(t4, t); r = RO + 4 * (t4 * 5 + t)
            for i in range(4):
                e(f"v_add_f32 v{a+i}, v{a+i}, v{r+i}")
            for i in range(4):
                e(f"v_mul_f32 v{a+i}, v{a+i}, v{LS+t}")
            e(f"v_cvt_pk_bf16_f32 v{OFR+4*t+2*t4}, v{a}, v{a+1}")
            e(f"v_cvt_pk_bf16_f32 v{OFR+4*t+2*t4+1}, v{a+2}, v{a+3}")
    for t in range(5):
        e(f"ds_write_b128 v14, {vr(OFR+4*t)} offset:{t*1024}", tag="ow")
    if cfg.dump == "o":
        dump(e, [OFR + 4 * t for t in range(5)])
    e("s_lshl_b32 s49, s11, 6")
    for i in range(4): e(f"v_xor_b32 v{7+i}, s49, v{7+i}")
    aread(32)
    e.wait(lg="all")
    e("s_barrier")
    stamp()
    e("s_cmp_eq_u32 s9, 7")
    e("s_cbranch_scc1 L_main_fin")
    def oread(wp, t):
        off = wp * 10240 + t * 1024
        a, off = ("v11", off) if off < 40960 else ("v12", off - 40960)
        e(f"ds_read_b128 {vr(PF+4*t)}, {a} offset:{off}", tag=f"bf{32+wp}_{t}")
    for t in range(5): oread(0, t)
    for wp in range(8):
        bn = (lambda t, wp=wp: oread(wp + 1, t)) if wp < 7 else None
        gemm_kstep(32 + wp, wp == 0, bn, [], 0, last_a=(wp == 7))
    for t in range(5):
        for half in range(2):
            d = 32 + (t * 2 + half) * 4
            for tt in range(2):
                a = acc2(2 * half + tt, t)
                e(f"v_cvt_pk_bf16_f32 v{d+2*tt}, v{a}, v{a+1}")
                e(f"v_cvt_pk_bf16_f32 v{d+2*tt+1}, v{a+2}, v{a+3}")
            e(f"s_mov_b32 s49, {t*2048 + half*1024}")
            e(f"buffer_store_dwordx4 {vr(d)}, v0, s[44:47], s49 offen{cfg.st_pol}", tag="st")
    e.label("L_main_fin")
    e("s_waitcnt vmcnt(0)")
    if cfg.stamps:
        stamp()
        e("s_cmp_lg_u32 s9, 0")
        e("s_cbranch_scc1 L_main_end")
        e("s_waitcnt lgkmcnt(0)")
        n = len(stamp_regs)
        e(f"s_add_u32 s50, s22, {268435456 - (1<<20)}")
        e("s_addc_u32 s51, s23, 0")
        e(f"s_mul_i32 s49, s2, {8*n}")
        e("s_add_u32 s50, s50, s49")
        e("s_addc_u32 s51, s51, 0")
        e("v_mov_b32 v34, 0")
        e("s_mov_b64 exec, 1")
        for i, r in enumerate(stamp_regs):
            e(f"v_mov_b32 v32, s{r}")
            e(f"v_mov_b32 v33, s{r+1}")
            e(f"global_store_dwordx2 v34, v[32:33], s[50:51] offset:{8*i}")
            e("s_waitcnt vmcnt(0)")
    e.label("L_main_end")
    e("s_endpgm")
    cfg.nstamps = len(stamp_regs)
    return e

def dump(e, quads):
    e("s_lshl_b32 s56, s2, 3")
    e("s_add_u32 s56, s56, s9")
    e("s_lshl_b32 s56, s56, 15")
    e("s_add_u32 s56, s56, 0x4000000")
    e("s_add_u32 s56, s22, s56")
    e("s_addc_u32 s57, s23, 0")
    e("v_mov_b32 v255, v0")
    for k, q in enumerate(quads):
        e(f"global_store_dwordx4 v255, {vr(q)}, s[56:57]", tag="dump")
        e("v_add_u32 v255, 1024, v255")
    e.wait(vm="dump")

def gen_reduce(cfg):
    e = Emitter()
    e("""
    s_cmp_ge_u32 s2, 560
    s_cbranch_scc1 L_red_end
    s_load_dwordx2 s[4:5], s[0:1], 80
    s_load_dwordx2 s[6:7], s[0:1], 96
    s_and_b32 s8, s2, 15
    s_lshr_b32 s9, s2, 4
    s_mul_i32 s10, s8, 1146880
    s_lshl_b32 s11, s9, 11
    s_add_u32 s10, s10, s11
    v_lshlrev_b32 v1, 4, v0
    """)
    e.wait(lg="all")
    e(f"""
    s_add_u32 s12, s6, s10
    s_addc_u32 s13, s7, 0
    s_mov_b32 s14, {15*71680 + 2048}
    s_mov_b32 s15, 0x00020000
    """)
    for h in range(16):
        e(f"s_mov_b32 s{20 + (h&1)}, {h*71680}")
        e(f"buffer_load_dwordx4 {vr(16+4*h)}, v1, s[12:15], s{20+(h&1)} offen{cfg.rd_pol}", tag=f"p{h}")
    e("""
    s_mul_i32 s16, s9, 52
    s_lshr_b32 s16, s16, 8
    s_mul_i32 s17, s16, 5
    s_sub_u32 s17, s9, s17
    s_lshr_b32 s18, s8, 3
    s_and_b32 s19, s8, 7
    s_mul_i32 s19, s19, 80
    s_lshl_b32 s17, s17, 4
    s_add_u32 s19, s19, s17
    s_mul_i32 s19, s19, 1792
    s_mul_i32 s18, s18, 896
    s_add_u32 s19, s19, s18
    s_lshl_b32 s16, s16, 7
    s_add_u32 s19, s19, s16
    s_mov_b32 s24, s4
    s_mov_b32 s25, s5
    s_mov_b32 s26, 1146880
    s_mov_b32 s27, 0x00020000
    s_mov_b32 s28, 0xffff0000
    v_and_b32 v2, 15, v0
    v_mul_u32_u24 v2, 1792, v2
    v_lshrrev_b32 v3, 4, v0
    v_and_b32 v4, 3, v3
    v_lshl_add_u32 v2, v4, 3, v2
    v_lshrrev_b32 v3, 2, v3
    v_lshl_add_u32 v2, v3, 6, v2
    """)
    for h in range(16):
        e.wait(vm=f"p{h}")
        for i in range(4):
            s = 16 + 4 * h + i
            if h == 0:
                e(f"v_lshlrev_b32 v{8+2*i}, 16, v{s}")
                e(f"v_and_b32 v{9+2*i}, s28, v{s}")
            else:
                e(f"v_lshlrev_b32 v5, 16, v{s}")
                e(f"v_and_b32 v6, s28, v{s}")
                e(f"v_add_f32 v{8+2*i}, v{8+2*i}, v5")
                e(f"v_add_f32 v{9+2*i}, v{9+2*i}, v6")
    for i in range(4):
        e(f"v_cvt_pk_bf16_f32 v{16+i}, v{8+2*i}, v{9+2*i}")
    e("buffer_store_dwordx2 v[16:17], v2, s[24:27], s19 offen")
    e("buffer_store_dwordx2 v[18:19], v2, s[24:27], s19 offen offset:32")
    e.label("L_red_end")
    e("s_endpgm")
    return e

def build(cfg, fname):
    km = NAME + "_kernel"; kr = NAME + "_reduce_kernel"
    em = gen_main(cfg); er = gen_reduce(cfg)
    txt = HEADER_COMMENT
    txt += f"; @launch kernel={km} grid=(256,1,1) block=(512,1,1) lds=163840\n"
    txt += f"; @launch kernel={kr} grid=(560,1,1) block=(128,1,1) lds=0\n"
    txt += '.amdgcn_target "amdgcn-amd-amdhsa--gfx950"\n.text\n'
    txt += kernel_start(km) + em.finalize() + kernel_start(kr) + er.finalize()
    txt += '.section .rodata,"a"\n.p2align 6\n' + kernel_desc(km, 256, 96, 256) + ".p2align 6\n" + kernel_desc(kr, 80, 32, 80)
    open(fname, "w").write(txt)
    print(fname, "main nops:", em.nnops, "stamps:", cfg.nstamps, "instrs:", len(em.items))

if __name__ == "__main__":
    cfg = Cfg()
    out = sys.argv[1]
    for kv in sys.argv[2:]:
        k, v = kv.split("=", 1)
        if v in ("True", "False"): v = v == "True"
        elif k.endswith("_pol"): v = (" " + v.replace("+", " ")) if v else ""
        setattr(cfg, k, v)
    build(cfg, out)
```

```python
import sys, struct, math
from emit import Emitter
from asmlib import NAME, HEADER_COMMENT, kernel_desc, kernel_start

XB = 81920
WAREA = 10240
def f32bits(x): return struct.unpack("<I", struct.pack("<f", x))[0]

class Cfg:
    stamps = False
    dump = None
    kv_pol = " nt"
    w_pol = ""
    st_pol = ""
    rd_pol = ""
    fill_exp = True
    prio = False
    dbgstamps = False

def vr(a, n=4): return f"v[{a}:{a+n-1}]"

def gen_main(cfg):
    e = Emitter()
    stamp_regs = []
    def stamp(real=False):
        if cfg.stamps:
            r = 60 + 2 * len(stamp_regs)
            stamp_regs.append(r)
            e(f"s_memrealtime s[{r}:{r+1}]" if (real or cfg.dbgstamps) else f"s_memtime s[{r}:{r+1}]")
    e("s_cmp_ge_u32 s2, 256")
    e("s_cbranch_scc1 L_main_end")
    stamp(True)
    stamp()
    e("""
    s_and_b32 s3, s2, 7
    s_lshr_b32 s4, s2, 3
    s_lshr_b32 s5, s4, 4
    s_lshr_b32 s6, s4, 1
    s_and_b32 s6, s6, 7
    s_and_b32 s7, s4, 1
    s_lshl_b32 s8, s3, 1
    s_add_u32 s8, s8, s7
    s_mul_i32 s49, s5, 40
    s_add_u32 s50, s0, s49
    s_addc_u32 s51, s1, 0
    s_load_dwordx8 s[12:19], s[50:51], 0
    s_load_dwordx2 s[20:21], s[50:51], 32
    s_load_dwordx2 s[22:23], s[0:1], 96
    v_lshrrev_b32 v26, 6, v0
    v_and_b32 v1, 63, v0
    v_readfirstlane_b32 s9, v26
    v_lshlrev_b32 v0, 4, v1
    s_and_b32 s10, s9, 3
    s_lshr_b32 s11, s9, 2
    s_mul_i32 s48, s9, 10240
    """)
    e("""
    v_lshrrev_b32 v26, 4, v1
    v_and_b32 v27, 15, v1
    v_lshrrev_b32 v28, 3, v1
    v_and_b32 v29, 7, v1
    """)
    e("""
    v_xor_b32 v30, s9, v1
    v_lshlrev_b32 v30, 4, v30
    v_xor_b32 v31, 0x80, v30
    """)
    e("""
    s_lshl_b32 s49, s11, 1
    v_xor_b32 v23, s49, v27
    v_lshlrev_b32 v23, 3, v23
    v_lshl_add_u32 v23, v26, 16, v23
    """)
    e("""
    v_lshrrev_b32 v24, 1, v28
    v_and_b32 v24, 1, v24
    v_and_b32 v25, 4, v28
    v_or_b32 v24, v24, v25
    v_xor_b32 v24, v24, v29
    v_lshlrev_b32 v24, 4, v24
    v_lshl_add_u32 v2, v28, 9, v24
    """)
    e("""
    v_and_b32 v24, 6, v28
    v_xor_b32 v24, v24, v29
    v_lshlrev_b32 v24, 4, v24
    v_lshl_add_u32 v3, v28, 9, v24
    v_mul_u32_u24 v4, 896, v28
    v_add_u32 v4, v4, v24
    """)
    e.wait(lg="all")
    e(f"""
    s_mul_i32 s49, s6, 71680
    s_add_u32 s24, s12, s49
    s_addc_u32 s25, s13, 0
    s_mov_b32 s26, 71680
    s_mov_b32 s27, 0x00020000
    s_mul_i32 s49, s11, {224*8192}
    s_lshl_b32 s50, s8, 9
    s_add_u32 s49, s49, s50
    s_lshl_b32 s50, s10, 7
    s_add_u32 s49, s49, s50
    s_add_u32 s28, s18, s49
    s_addc_u32 s29, s19, 0
    s_mov_b32 s30, {223*8192+128}
    s_mov_b32 s31, 0x00020000
    """)
    e(f"s_mul_i32 s52, s9, 896")
    e(f"s_mul_i32 s53, s9, 5120")
    e(f"s_add_u32 s53, s53, {XB}")
    for k in range(10):
        e(f"s_add_u32 m0, s53, {(40960 if k & 1 else 0) + (k >> 1) * 1024}")
        e(f"s_add_u32 s49, s52, {k * 7168}")
        e(f"buffer_load_dwordx4 v{31 if k & 1 else 30}, s[24:27], s49 offen{cfg.w_pol} lds", tag="x")
    WQR = 112
    def wq_issue(s):
        base = WQR + (s % 6) * 16
        for i in range(8):
            e(f"s_mov_b32 s{49 + (i & 1)}, {(32 * s + i) * 8192}")
            e(f"buffer_load_dwordx2 {vr(base + 2 * i, 2)}, v23, s[28:31], s{49 + (i & 1)} offen{cfg.w_pol}", tag=f"wq{s}")
    for s in range(4): wq_issue(s)
    e(f"""
    s_lshl_b32 s49, s6, 3
    s_add_u32 s49, s49, s3
    s_lshl_b32 s49, s49, 19
    s_lshl_b32 s50, s9, 16
    s_add_u32 s50, s50, s49
    s_add_u32 s32, s14, s50
    s_addc_u32 s33, s15, 0
    s_mov_b32 s34, 65536
    s_mov_b32 s35, 0x00020000
    s_lshl_b32 s50, s11, 18
    s_add_u32 s50, s50, s49
    s_lshl_b32 s51, s10, 7
    s_add_u32 s50, s50, s51
    s_add_u32 s36, s16, s50
    s_addc_u32 s37, s17, 0
    s_mov_b32 s38, 261760
    s_mov_b32 s39, 0x00020000
    s_mul_i32 s50, s8, 229376
    s_lshl_b32 s51, s9, 7
    s_add_u32 s50, s50, s51
    s_add_u32 s40, s20, s50
    s_addc_u32 s41, s21, 0
    s_sub_u32 s42, 229376, s51
    s_mov_b32 s43, 0x00020000
    s_lshl_b32 s50, s5, 3
    s_add_u32 s50, s50, s6
    s_lshl_b32 s50, s50, 4
    s_add_u32 s50, s50, s8
    s_mul_i32 s50, s50, 71680
    s_add_u32 s50, s50, s48
    s_add_u32 s44, s22, s50
    s_addc_u32 s45, s23, 0
    s_mov_b32 s46, 10240
    s_mov_b32 s47, 0x00020000
    """)
    blocks = []
    for c in range(4):
        for dp in range(4):
            for rg in range(4):
                blocks.append(("K", c * 16384 + rg * 4096 + dp * 128))
    for c in range(4):
        for j in range(4):
            for rg in range(4):
                blocks.append(("V", (128 * j + 32 * c + 8 * rg) * 512))
    for wp in range(8):
        d0 = 64 * (wp & 3) + 32 * (wp >> 2)
        for rg in range(4):
            blocks.append(("W", (d0 + 8 * rg) * 896))
    NB = len(blocks)
    def slot(i): return i if i < 10 else (i - 10) % 8
    def prev(i): return -1 if i < 10 else (i - 10 if i < 18 else i - 8)
    st = {"next": 0, "consumed": -1}
    def dma_list():
        out = []
        while st["next"] < NB and prev(st["next"]) <= st["consumed"]:
            i = st["next"]; st["next"] += 1
            kind, off = blocks[i]
            srd, vo, pol = {"K": (32, 2, cfg.kv_pol), "V": (36, 3, cfg.kv_pol), "W": (40, 4, cfg.w_pol)}[kind]
            out.append((i, [f"s_add_u32 m0, s48, {slot(i) * 1024}",
                            f"s_mov_b32 s49, {off}",
                            f"buffer_load_dwordx4 v{vo}, s[{srd}:{srd+3}], s49 offen{pol} lds"]))
        return out
    def dma_emit(g):
        i, lines = g
        e(lines[0]); e(lines[1]); e(lines[2], tag=f"blk{i}")
    for g in dma_list(): dma_emit(g)
    wq_issue(4)
    e("""
    v_and_b32 v24, 7, v27
    v_lshrrev_b32 v25, 1, v24
    v_and_b32 v25, 1, v25
    v_and_b32 v5, 4, v24
    v_or_b32 v25, v25, v5
    v_lshlrev_b32 v5, 1, v26
    v_xor_b32 v5, v5, v25
    v_lshlrev_b32 v5, 4, v5
    v_lshl_add_u32 v5, v24, 7, v5
    v_lshrrev_b32 v24, 3, v27
    v_lshl_add_u32 v5, v24, 10, v5
    v_add_u32 v5, s48, v5
    v_xor_b32 v6, 16, v5
    """)
    e("""
    v_lshrrev_b32 v24, 2, v27
    v_and_b32 v25, 1, v26
    v_lshl_add_u32 v24, v25, 2, v24
    v_lshrrev_b32 v25, 1, v24
    v_xor_b32 v25, s11, v25
    v_xor_b32 v25, s11, v25
    v_lshlrev_b32 v7, 5, v25
    v_lshl_add_u32 v7, v24, 7, v7
    v_and_b32 v25, 3, v27
    v_lshl_add_u32 v7, v25, 3, v7
    v_lshrrev_b32 v25, 1, v26
    v_lshl_add_u32 v7, v25, 10, v7
    v_add_u32 v7, s48, v7
    s_lshl_b32 s49, s11, 6
    v_xor_b32 v7, s49, v7
    v_xor_b32 v8, 32, v7
    v_xor_b32 v9, 64, v7
    v_xor_b32 v10, 0x60, v7
    """)
    e(f"""
    v_add_u32 v11, {XB}, v0
    v_add_u32 v12, {XB + 40960}, v0
    s_mul_i32 s49, s9, 5120
    v_add_u32 v13, s49, v11
    v_add_u32 v14, s48, v11
    s_xor_b32 s49, s9, 4
    s_mul_i32 s49, s49, 10240
    v_add_u32 v15, s49, v11
    s_mov_b32 s52, 0x05040100
    s_mov_b32 s53, 0x07060302
    s_mov_b32 s54, {f32bits(math.log2(math.e) / 16.0):#x}
    s_mov_b32 s55, 0xffff0000
    """)
    e("s_mul_i32 s49, s11, 28")
    e("v_add_u32 v24, s49, v26")
    e("v_mul_u32_u24 v25, 5120, v27")
    e(f"v_add_u32 v25, {XB}, v25")
    for s in range(7):
        e(f"v_add_u32 v{16+s}, {4*s}, v24")
        e(f"v_xor_b32 v{16+s}, v{16+s}, v27")
        e(f"v_lshl_add_u32 v{16+s}, v{16+s}, 4, v25")
    e.wait(vm="x")
    e("s_barrier")
    stamp()
    wq_issue(5)
    QACC = 32
    def qacc(j, t): return QACC + (j * 5 + t) * 4
    AF = 208
    XF = [240, 244, 248, 252, 28]
    def perms(s):
        base = WQR + (s % 6) * 16
        out = []
        for j in range(4):
            for p in range(4):
                lo = base + 2 * (2 * p) + (j >> 1); hi = base + 2 * (2 * p + 1) + (j >> 1)
                out.append(f"v_perm_b32 v{AF + (s % 2) * 16 + j * 4 + p}, v{hi}, v{lo}, s{52 + (j & 1)}")
        return out
    for t in range(5):
        e(f"ds_read_b128 {vr(XF[t])}, v16 offset:{t*1024}", tag=f"xf0_{t}")
    e.wait(vm="wq0")
    for p in perms(0): e(p)
    for s in range(7):
        fill = []
        if s + 1 < 7:
            fill = perms(s + 1)
        for t in range(5):
            e.wait(lg=f"xf{s}_{t}")
            for j in range(4):
                c = "0" if s == 0 else vr(qacc(j, t))
                e(f"v_mfma_f32_16x16x32_bf16 {vr(qacc(j,t))}, {vr(AF + (s%2)*16 + j*4)}, {vr(XF[t])}, {c}")
                if t == 0 and j == 0:
                    if s == 0: wq_issue(6)
                    if s + 1 < 7: e.wait(vm=f"wq{s+1}")
                elif fill:
                    e(fill.pop(0))
            if s + 1 < 7:
                e(f"ds_read_b128 {vr(XF[t])}, v{16+s+1} offset:{t*1024}", tag=f"xf{s+1}_{t}")
        for f in fill: e(f)
    stamp()
    e("v_lshlrev_b32 v24, 3, v1")
    e("s_xor_b32 s49, s9, 4")
    e("s_mul_i32 s49, s49, 10240")
    e(f"s_add_u32 s49, s49, {XB}")
    e("v_add_u32 v25, s49, v24")
    e(f"s_add_u32 s49, s48, {XB}")
    e("v_add_u32 v24, s49, v24")
    e("s_barrier")
    idx = [(j, t) for t in range(5) for j in range(4)]
    for k in range(0, 20, 2):
        a, b = idx[k], idx[k + 1]
        e(f"ds_write2st64_b64 v25, {vr(qacc(*a)+2, 2)}, {vr(qacc(*b)+2, 2)} offset0:{k} offset1:{k+1}", tag="qxw")
    e.wait(lg="all")
    e("s_barrier")
    RX = 112
    for k in range(0, 20, 2):
        e(f"ds_read2st64_b64 {vr(RX + 2*k)}, v24 offset0:{k} offset1:{k+1}", tag=f"qxr{k}")
    QF = 192
    for t in range(5):
        e.wait(lg=f"qxr{4*t+2}")
        for j in range(4):
            k = 4 * t + j
            e(f"v_add_f32 v{qacc(j,t)}, v{qacc(j,t)}, v{RX+2*k}")
            e(f"v_add_f32 v{qacc(j,t)+1}, v{qacc(j,t)+1}, v{RX+2*k+1}")
        e(f"v_cvt_pk_bf16_f32 v{QF+4*t}, v{qacc(0,t)}, v{qacc(1,t)}")
        e(f"v_cvt_pk_bf16_f32 v{QF+4*t+1}, v{qacc(2,t)}, v{qacc(3,t)}")
        e(f"v_cvt_pk_bf16_f32 v{QF+4*t+2}, v{qacc(0,t)+1}, v{qacc(1,t)+1}")
        e(f"v_cvt_pk_bf16_f32 v{QF+4*t+3}, v{qacc(2,t)+1}, v{qacc(3,t)+1}")
    for t in range(5):
        e(f"ds_write_b128 v14, {vr(QF+4*t)} offset:{t*1024}", tag="qw")
    if cfg.dump == "q":
        dump(e, [QF + 4 * t for t in range(5)])
    e.wait(lg="all")
    e("s_barrier")
    stamp()
    SR = 32
    def sreg(c, t): return SR + (c * 5 + t) * 4
    def acc1(p, u, t): return 112 + p * 40 + (u * 5 + t) * 4
    KF = 192
    QS = [224, 228, 232, 236, 240, 244, 248, 252, 24, 28]
    MX = 16
    def qfrag_addr(dp, ab, t):
        w = dp + 4 * ab
        off = w * 10240 + t * 1024
        return ("v11", off) if off < 40960 else ("v12", off - 40960)
    units = [(G, ab) for G in range(16) for ab in range(2)]
    def kread(G):
        e.wait(vm=f"blk{4*G+3}")
        for u in range(2):
            for ab in range(2):
                e(f"ds_read_b128 {vr(KF + (G%2)*16 + (u*2+ab)*4)}, v{5+ab} offset:{slot(4*G+2*u)*1024}", tag=f"kf{G}")
    def qread(k, t):
        G, ab = units[k]
        a, off = qfrag_addr(G % 4, ab, t)
        e(f"ds_read_b128 {vr(QS[(k%2)*5+t])}, {a} offset:{off}", tag=f"qf{k}_{t}")
    kread(0)
    for t in range(5): qread(0, t)
    for t in range(5): qread(1, t)
    fill = []
    for k, (G, ab) in enumerate(units):
        c, dp = G // 4, G % 4
        p = c % 2
        dmas = []
        if ab == 0 and G + 1 < 16:
            kread(G + 1)
        if ab == 1:
            pass
        for t in range(5):
            e.wait(lg=[f"qf{k}_{t}", f"kf{G}"])
            for u in range(2):
                cc = "0" if (dp == 0 and ab == 0) else vr(acc1(p, u, t))
                e(f"v_mfma_f32_16x16x32_bf16 {vr(acc1(p,u,t))}, {vr(KF + (G%2)*16 + (u*2+ab)*4)}, {vr(QS[(k%2)*5+t])}, {cc}")
                if fill and not (dp == 0 and ab == 0 and t < 4):
                    e(fill.pop(0))
                    if fill: e(fill.pop(0))
            if k + 2 < len(units): qread(k + 2, t)
            if ab == 1 and t == 0 or (k == 0 and t == 0):
                gdone = G + 1 if (ab == 1 and G + 1 < 16) else G
                e.wait(lg=f"kf{gdone}")
                st["consumed"] = 4 * gdone + 3
                dmas = dma_list()
            if dmas: dma_emit(dmas.pop(0))
        for g in dmas: dma_emit(g)
        if dp == 3 and ab == 1:
            for f in fill: e(f)
            fill = []
            for t in range(5):
                for u in range(2):
                    a = acc1(p, u, t)
                    if c == 0 and u == 0:
                        fill.append(f"v_max_f32 v{MX+t}, v{a}, v{a+1}")
                    else:
                        fill.append(f"v_max3_f32 v{MX+t}, v{a}, v{a+1}, v{MX+t}")
                    fill.append(f"v_cvt_pk_bf16_f32 v{sreg(c,t)+2*u}, v{a}, v{a+1}")
                    fill.append(f"v_max3_f32 v{MX+t}, v{a+2}, v{a+3}, v{MX+t}")
                    fill.append(f"v_cvt_pk_bf16_f32 v{sreg(c,t)+2*u+1}, v{a+2}, v{a+3}")
    for f in fill: e(f)
    stamp()
    if cfg.dump == "s":
        dump(e, [SR + 4 * i for i in range(20)])
    def xwave_reduce(R, op, area_off, tagp):
        for t in range(5):
            e(f"v_mov_b32 v{244+t}, v{R+t}")
        for t in range(5):
            e(f"v_permlane32_swap_b32 v{R+t}, v{244+t}")
        for t in range(5):
            e(f"{op} v{R+t}, v{R+t}, v{244+t}")
            e(f"v_mov_b32 v{244+t}, v{R+t}")
        for t in range(5):
            e(f"v_permlane16_swap_b32 v{R+t}, v{244+t}")
        for t in range(5):
            e(f"{op} v{244+t}, v{R+t}, v{244+t}")
        e("v_and_b32 v250, 15, v1")
        e("v_lshlrev_b32 v250, 5, v250")
        e(f"v_add_u32 v251, s48, v250")
        e(f"ds_write_b128 v251, v[244:247] offset:{area_off}", tag=tagp + "w")
        e(f"ds_write_b32 v251, v248 offset:{area_off+16}", tag=tagp + "w")
    def xwave_gather(R, op, area_off, tagp, T):
        e("v_and_b32 v250, 15, v1")
        e("v_lshlrev_b32 v250, 5, v250")
        e("v_add_u32 v251, 40960, v250")
        for w in range(8):
            a, off = ("v250", w * 10240 + area_off) if w < 4 else ("v251", (w - 4) * 10240 + area_off)
            e(f"ds_read_b128 {vr(T + 4*w)}, {a} offset:{off}", tag=f"{tagp}r{w}")
            e(f"ds_read_b32 v{T+32+w}, {a} offset:{off+16}", tag=f"{tagp}r{w}")
        e.wait(lg="all")
        for t in range(5):
            src = [(T + 4 * w + t) if t < 4 else (T + 32 + w) for w in range(8)]
            e(f"{op} v{R+t}, v{src[0]}, v{src[1]}")
            for w in range(2, 8):
                e(f"{op} v{R+t}, v{R+t}, v{src[w]}")
    xwave_reduce(MX, "v_max_f32", 8192, "mx")
    e.wait(lg="all")
    e("s_barrier")
    xwave_gather(MX, "v_max_f32", 8192, "mx", 112)
    for t in range(5):
        e(f"v_cvt_pk_bf16_f32 v{MX+t}, v{MX+t}, v{MX+t}")
        e(f"v_and_b32 v{MX+t}, s55, v{MX+t}")
        e(f"v_mul_f32 v{MX+t}, s54, v{MX+t}")
        e(f"v_sub_f32 v{MX+t}, 0, v{MX+t}")
    LS = 21
    stamp()
    def exp_ops(c):
        out = []
        n = 0
        for t in range(5):
            for r in range(4):
                s = sreg(c, t) + r
                ta = 244 + 2 * (n % 4); tb = ta + 1; n += 1
                out += [f"v_lshlrev_b32 v{ta}, 16, v{s}",
                        f"v_and_b32 v{tb}, s55, v{s}",
                        f"v_fma_f32 v{ta}, v{ta}, s54, v{MX+t}",
                        f"v_fma_f32 v{tb}, v{tb}, s54, v{MX+t}",
                        f"v_exp_f32 v{ta}, v{ta}",
                        f"v_exp_f32 v{tb}, v{tb}"]
                if c == 0 and r == 0:
                    out += [f"v_add_f32 v{LS+t}, v{ta}, v{tb}"]
                else:
                    out += [f"v_add_f32 v{LS+t}, v{LS+t}, v{ta}", f"v_add_f32 v{LS+t}, v{LS+t}, v{tb}"]
                out += [f"v_cvt_pk_bf16_f32 v{s}, v{ta}, v{tb}"]
        return out
    ACC = 112
    def acc2(t4, t): return ACC + (t4 * 5 + t) * 4
    VF = 192; PF = 224
    def aread(gi):
        e.wait(vm=f"blk{4*gi+3}")
        for t4 in range(4):
            for hh in range(2):
                e(f"ds_read_b64_tr_b16 {vr(VF + (gi%2)*16 + t4*4 + hh*2, 2)}, v{7+t4} offset:{slot(4*gi+2*hh)*1024}", tag=f"af{gi}")
    def gemm_kstep(gi, first, bnext, fill, nfill, last_a):
        dmas = []
        if not last_a: aread(gi + 1)
        for t in range(5):
            e.wait(lg=[f"bf{gi}_{t}", f"af{gi}"])
            for t4 in range(4):
                cc = "0" if first else vr(acc2(t4, t))
                e(f"v_mfma_f32_16x16x32_bf16 {vr(acc2(t4,t))}, {vr(VF + (gi%2)*16 + t4*4)}, {vr(PF+4*t)}, {cc}")
                for _ in range(nfill):
                    if fill: e(fill.pop(0))
                if t >= 2 and dmas: dma_emit(dmas.pop(0))
            if bnext: bnext(t)
            if t == 1:
                gdone = gi if last_a else gi + 1
                e.wait(lg=f"af{gdone}")
                st["consumed"] = 4 * gdone + 3
                dmas = dma_list()
        for g in dmas: dma_emit(g)
    e("s_mul_i32 s49, s11, 20480")
    e("v_add_u32 v26, s49, v11")
    def pread(c, j, t):
        gi = 16 + 4 * c + j
        e(f"ds_read_b128 {vr(PF+4*t)}, v26 offset:{(c&1)*40960 + j*5120 + t*1024}", tag=f"bf{gi}_{t}")
    for f in exp_ops(0): e(f)
    aread(16)
    for c in range(4):
        for t in range(5):
            e(f"ds_write_b128 v13, {vr(sreg(c,t))} offset:{(c&1)*40960 + t*1024}", tag="pw")
        e.wait(lg="pw")
        e("s_barrier")
        if c == 3:
            xwave_reduce(LS, "v_add_f32", 9216, "ls")
        for t in range(5): pread(c, 0, t)
        fill = exp_ops(c + 1) if c < 3 else []
        if not cfg.fill_exp:
            pre, fill = fill, []
        for j in range(4):
            gi = 16 + 4 * c + j
            bn = (lambda t, c=c, j=j: pread(c, j + 1, t)) if j < 3 else None
            gemm_kstep(gi, c == 0 and j == 0, bn, fill, 3, last_a=(gi == 31))
        for f in fill: e(f)
        if not cfg.fill_exp:
            for f in pre: e(f)
    stamp()
    e.wait(lg="all")
    e("s_barrier")
    for t4 in (2, 3):
        for t in range(5):
            e(f"ds_write_b128 v15, {vr(acc2(t4,t))} offset:{((t4-2)*5+t)*1024}", tag="oxw")
    e.wait(lg="all")
    e("s_barrier")
    RO = 32
    for k in range(10):
        e(f"ds_read_b128 {vr(RO+4*k)}, v14 offset:{k*1024}", tag=f"oxr{k}")
    xwave_gather(LS, "v_add_f32", 9216, "ls", 72)
    for t in range(5):
        e(f"v_rcp_f32 v{LS+t}, v{LS+t}")
    OFR = 72
    for t in range(5):
        for t4 in range(2):
            a = acc2(t4, t); r = RO + 4 * (t4 * 5 + t)
            for i in range(4):
                e(f"v_add_f32 v{a+i}, v{a+i}, v{r+i}")
            for i in range(4):
                e(f"v_mul_f32 v{a+i}, v{a+i}, v{LS+t}")
            e(f"v_cvt_pk_bf16_f32 v{OFR+4*t+2*t4}, v{a}, v{a+1}")
            e(f"v_cvt_pk_bf16_f32 v{OFR+4*t+2*t4+1}, v{a+2}, v{a+3}")
    for t in range(5):
        e(f"ds_write_b128 v14, {vr(OFR+4*t)} offset:{t*1024}", tag="ow")
    if cfg.dump == "o":
        dump(e, [OFR + 4 * t for t in range(5)])
    e("s_lshl_b32 s49, s11, 6")
    for i in range(4): e(f"v_xor_b32 v{7+i}, s49, v{7+i}")
    aread(32)
    e.wait(lg="all")
    e("s_barrier")
    stamp()
    e("s_cmp_eq_u32 s9, 7")
    e("s_cbranch_scc1 L_main_fin")
    def oread(wp, t):
        off = wp * 10240 + t * 1024
        a, off = ("v11", off) if off < 40960 else ("v12", off - 40960)
        e(f"ds_read_b128 {vr(PF+4*t)}, {a} offset:{off}", tag=f"bf{32+wp}_{t}")
    for t in range(5): oread(0, t)
    for wp in range(8):
        bn = (lambda t, wp=wp: oread(wp + 1, t)) if wp < 7 else None
        gemm_kstep(32 + wp, wp == 0, bn, [], 0, last_a=(wp == 7))
    for t in range(5):
        for half in range(2):
            d = 32 + (t * 2 + half) * 4
            for tt in range(2):
                a = acc2(2 * half + tt, t)
                e(f"v_cvt_pk_bf16_f32 v{d+2*tt}, v{a}, v{a+1}")
                e(f"v_cvt_pk_bf16_f32 v{d+2*tt+1}, v{a+2}, v{a+3}")
            e(f"s_mov_b32 s49, {t*2048 + half*1024}")
            e(f"buffer_store_dwordx4 {vr(d)}, v0, s[44:47], s49 offen{cfg.st_pol}", tag="st")
    e.label("L_main_fin")
    e("s_waitcnt vmcnt(0)")
    if cfg.stamps:
        stamp()
        stamp(True)
        e("s_cmp_lg_u32 s9, 0")
        e("s_cbranch_scc1 L_main_end")
        e("s_waitcnt lgkmcnt(0)")
        n = len(stamp_regs)
        if cfg.dbgstamps:
            e("s_load_dwordx2 s[56:57], s[0:1], 88")
            e("s_waitcnt lgkmcnt(0)")
            e("v_mov_b32 v34, 0")
            e("s_mov_b64 exec, 1")
            sel = [0, 2, 4, 5, 7, 8, 10]
            for i, j in enumerate(sel):
                r = stamp_regs[j]
                e(f"v_mov_b32 v32, s{r}")
                e(f"v_not_b32 v33, v32")
                e(f"global_atomic_umax v34, v32, s[56:57] offset:{8*i}")
                e(f"global_atomic_umax v34, v33, s[56:57] offset:{8*i+4}")
            e("s_waitcnt vmcnt(0)")
            e("s_endpgm")
        e(f"s_add_u32 s50, s22, {268435456 - (1<<20)}")
        e("s_addc_u32 s51, s23, 0")
        e(f"s_mul_i32 s49, s2, {8*n}")
        e("s_add_u32 s50, s50, s49")
        e("s_addc_u32 s51, s51, 0")
        e("v_mov_b32 v34, 0")
        e("s_mov_b64 exec, 1")
        for i, r in enumerate(stamp_regs):
            e(f"v_mov_b32 v32, s{r}")
            e(f"v_mov_b32 v33, s{r+1}")
            e(f"global_store_dwordx2 v34, v[32:33], s[50:51] offset:{8*i}")
            e("s_waitcnt vmcnt(0)")
    e.label("L_main_end")
    e("s_endpgm")
    cfg.nstamps = len(stamp_regs)
    return e

def dump(e, quads):
    e("s_lshl_b32 s56, s2, 3")
    e("s_add_u32 s56, s56, s9")
    e("s_lshl_b32 s56, s56, 15")
    e("s_add_u32 s56, s56, 0x4000000")
    e("s_add_u32 s56, s22, s56")
    e("s_addc_u32 s57, s23, 0")
    e("v_mov_b32 v255, v0")
    for k, q in enumerate(quads):
        e(f"global_store_dwordx4 v255, {vr(q)}, s[56:57]", tag="dump")
        e("v_add_u32 v255, 1024, v255")
    e.wait(vm="dump")

def gen_reduce(cfg):
    e = Emitter()
    e("""
    s_cmp_ge_u32 s2, 560
    s_cbranch_scc1 L_red_end
    s_memrealtime s[30:31]
    s_load_dwordx2 s[4:5], s[0:1], 80
    s_load_dwordx2 s[6:7], s[0:1], 96
    s_and_b32 s8, s2, 15
    s_lshr_b32 s9, s2, 4
    s_mul_i32 s10, s8, 1146880
    s_lshl_b32 s11, s9, 11
    s_add_u32 s10, s10, s11
    v_lshlrev_b32 v1, 4, v0
    """)
    e.wait(lg="all")
    e(f"""
    s_add_u32 s12, s6, s10
    s_addc_u32 s13, s7, 0
    s_mov_b32 s14, {15*71680 + 2048}
    s_mov_b32 s15, 0x00020000
    """)
    for h in range(16):
        e(f"s_mov_b32 s{20 + (h&1)}, {h*71680}")
        e(f"buffer_load_dwordx4 {vr(16+4*h)}, v1, s[12:15], s{20+(h&1)} offen{cfg.rd_pol}", tag=f"p{h}")
    e("""
    s_mul_i32 s16, s9, 52
    s_lshr_b32 s16, s16, 8
    s_mul_i32 s17, s16, 5
    s_sub_u32 s17, s9, s17
    s_lshr_b32 s18, s8, 3
    s_and_b32 s19, s8, 7
    s_mul_i32 s19, s19, 80
    s_lshl_b32 s17, s17, 4
    s_add_u32 s19, s19, s17
    s_mul_i32 s19, s19, 1792
    s_mul_i32 s18, s18, 896
    s_add_u32 s19, s19, s18
    s_lshl_b32 s16, s16, 7
    s_add_u32 s19, s19, s16
    s_mov_b32 s24, s4
    s_mov_b32 s25, s5
    s_mov_b32 s26, 1146880
    s_mov_b32 s27, 0x00020000
    s_mov_b32 s28, 0xffff0000
    v_and_b32 v2, 15, v0
    v_mul_u32_u24 v2, 1792, v2
    v_lshrrev_b32 v3, 4, v0
    v_and_b32 v4, 3, v3
    v_lshl_add_u32 v2, v4, 3, v2
    v_lshrrev_b32 v3, 2, v3
    v_lshl_add_u32 v2, v3, 6, v2
    """)
    for h in range(16):
        e.wait(vm=f"p{h}")
        for i in range(4):
            s = 16 + 4 * h + i
            if h == 0:
                e(f"v_lshlrev_b32 v{8+2*i}, 16, v{s}")
                e(f"v_and_b32 v{9+2*i}, s28, v{s}")
            else:
                e(f"v_lshlrev_b32 v5, 16, v{s}")
                e(f"v_and_b32 v6, s28, v{s}")
                e(f"v_add_f32 v{8+2*i}, v{8+2*i}, v5")
                e(f"v_add_f32 v{9+2*i}, v{9+2*i}, v6")
    for i in range(4):
        e(f"v_cvt_pk_bf16_f32 v{16+i}, v{8+2*i}, v{9+2*i}")
    e("buffer_store_dwordx2 v[16:17], v2, s[24:27], s19 offen")
    e("buffer_store_dwordx2 v[18:19], v2, s[24:27], s19 offen offset:32")
    if cfg.stamps:
        e("s_waitcnt vmcnt(0)")
        e("s_memrealtime s[32:33]")
        e("s_waitcnt lgkmcnt(0)")
        e(f"s_add_u32 s34, s6, {268435456 - (1<<19)}")
        e("s_addc_u32 s35, s7, 0")
        e("s_lshl_b32 s36, s2, 4")
        e("s_add_u32 s34, s34, s36")
        e("s_addc_u32 s35, s35, 0")
        e("v_mov_b32 v8, s30\nv_mov_b32 v9, s31\nv_mov_b32 v10, s32\nv_mov_b32 v11, s33\nv_mov_b32 v12, 0")
        e("v_cmp_eq_u32 vcc, 0, v0")
        e("s_and_saveexec_b64 s[38:39], vcc")
        e("s_cbranch_execz L_red_end")
        e("global_store_dwordx4 v12, v[8:11], s[34:35]")
    e.label("L_red_end")
    e("s_endpgm")
    return e

def build(cfg, fname):
    km = NAME + "_kernel"; kr = NAME + "_reduce_kernel"
    em = gen_main(cfg); er = gen_reduce(cfg)
    txt = HEADER_COMMENT
    txt += f"; @launch kernel={km} grid=(256,1,1) block=(512,1,1) lds=163840\n"
    txt += f"; @launch kernel={kr} grid=(560,1,1) block=(128,1,1) lds=0\n"
    txt += '.amdgcn_target "amdgcn-amd-amdhsa--gfx950"\n.text\n'
    txt += kernel_start(km) + em.finalize() + kernel_start(kr) + er.finalize()
    txt += '.section .rodata,"a"\n.p2align 6\n' + kernel_desc(km, 256, 100, 256) + ".p2align 6\n" + kernel_desc(kr, 80, 48, 80)
    open(fname, "w").write(txt)
    print(fname, "main nops:", em.nnops, "stamps:", cfg.nstamps, "instrs:", len(em.items))

if __name__ == "__main__":
    cfg = Cfg()
    out = sys.argv[1]
    for kv in sys.argv[2:]:
        k, v = kv.split("=", 1)
        if v in ("True", "False"): v = v == "True"
        elif k.endswith("_pol"): v = (" " + v.replace("+", " ")) if v else ""
        setattr(cfg, k, v)
    build(cfg, out)
```

```python
import sys, struct, math
from emit import Emitter
from asmlib import NAME, HEADER_COMMENT, kernel_desc, kernel_start

XB = 81920
WAREA = 10240
def f32bits(x): return struct.unpack("<I", struct.pack("<f", x))[0]

class Cfg:
    stamps = False
    dump = None
    kv_pol = " nt"
    w_pol = ""
    st_pol = ""
    rd_pol = ""
    fill_exp = True
    prio = False
    dbgstamps = False

def vr(a, n=4): return f"v[{a}:{a+n-1}]"

def gen_main(cfg):
    e = Emitter()
    stamp_regs = []
    def stamp(real=False):
        if cfg.stamps:
            r = 60 + 2 * len(stamp_regs)
            stamp_regs.append(r)
            e(f"s_memrealtime s[{r}:{r+1}]" if (real or cfg.dbgstamps) else f"s_memtime s[{r}:{r+1}]")
    e("s_cmp_ge_u32 s2, 256")
    e("s_cbranch_scc1 L_main_end")
    stamp(True)
    stamp()
    e("""
    s_and_b32 s3, s2, 7
    s_lshr_b32 s4, s2, 3
    s_lshr_b32 s5, s4, 4
    s_lshr_b32 s6, s4, 1
    s_and_b32 s6, s6, 7
    s_and_b32 s7, s4, 1
    s_lshl_b32 s8, s3, 1
    s_add_u32 s8, s8, s7
    s_mul_i32 s49, s5, 40
    s_add_u32 s50, s0, s49
    s_addc_u32 s51, s1, 0
    s_load_dwordx8 s[12:19], s[50:51], 0
    s_load_dwordx2 s[20:21], s[50:51], 32
    s_load_dwordx2 s[22:23], s[0:1], 96
    v_lshrrev_b32 v26, 6, v0
    v_and_b32 v1, 63, v0
    v_readfirstlane_b32 s9, v26
    v_lshlrev_b32 v0, 4, v1
    s_and_b32 s10, s9, 3
    s_lshr_b32 s11, s9, 2
    s_mul_i32 s48, s9, 10240
    """)
    e("""
    v_lshrrev_b32 v26, 4, v1
    v_and_b32 v27, 15, v1
    v_lshrrev_b32 v28, 3, v1
    v_and_b32 v29, 7, v1
    """)
    e("""
    v_xor_b32 v30, s9, v1
    v_lshlrev_b32 v30, 4, v30
    v_xor_b32 v31, 0x80, v30
    """)
    e("""
    s_lshl_b32 s49, s11, 1
    v_xor_b32 v23, s49, v27
    v_lshlrev_b32 v23, 3, v23
    v_lshl_add_u32 v23, v26, 16, v23
    """)
    e("""
    v_lshrrev_b32 v24, 1, v28
    v_and_b32 v24, 1, v24
    v_and_b32 v25, 4, v28
    v_or_b32 v24, v24, v25
    v_xor_b32 v24, v24, v29
    v_lshlrev_b32 v24, 4, v24
    v_lshl_add_u32 v2, v28, 9, v24
    """)
    e("""
    v_and_b32 v24, 6, v28
    v_xor_b32 v24, v24, v29
    v_lshlrev_b32 v24, 4, v24
    v_lshl_add_u32 v3, v28, 9, v24
    v_mul_u32_u24 v4, 896, v28
    v_add_u32 v4, v4, v24
    """)
    e.wait(lg="all")
    e(f"""
    s_mul_i32 s49, s6, 71680
    s_add_u32 s24, s12, s49
    s_addc_u32 s25, s13, 0
    s_mov_b32 s26, 71680
    s_mov_b32 s27, 0x00020000
    s_mul_i32 s49, s11, {224*8192}
    s_lshl_b32 s50, s8, 9
    s_add_u32 s49, s49, s50
    s_lshl_b32 s50, s10, 7
    s_add_u32 s49, s49, s50
    s_add_u32 s28, s18, s49
    s_addc_u32 s29, s19, 0
    s_mov_b32 s30, {223*8192+128}
    s_mov_b32 s31, 0x00020000
    """)
    e(f"s_mul_i32 s52, s9, 896")
    e(f"s_mul_i32 s53, s9, 5120")
    e(f"s_add_u32 s53, s53, {XB}")
    for k in range(10):
        e(f"s_add_u32 m0, s53, {(40960 if k & 1 else 0) + (k >> 1) * 1024}")
        e(f"s_add_u32 s49, s52, {k * 7168}")
        e(f"buffer_load_dwordx4 v{31 if k & 1 else 30}, s[24:27], s49 offen{cfg.w_pol} lds", tag="x")
    WQR = 112
    def wq_issue(s):
        base = WQR + (s % 6) * 16
        for i in range(8):
            e(f"s_mov_b32 s{49 + (i & 1)}, {(32 * s + i) * 8192}")
            e(f"buffer_load_dwordx2 {vr(base + 2 * i, 2)}, v23, s[28:31], s{49 + (i & 1)} offen{cfg.w_pol}", tag=f"wq{s}")
    for s in range(4): wq_issue(s)
    e(f"""
    s_lshl_b32 s49, s6, 3
    s_add_u32 s49, s49, s3
    s_lshl_b32 s49, s49, 19
    s_lshl_b32 s50, s9, 16
    s_add_u32 s50, s50, s49
    s_add_u32 s32, s14, s50
    s_addc_u32 s33, s15, 0
    s_mov_b32 s34, 65536
    s_mov_b32 s35, 0x00020000
    s_lshl_b32 s50, s11, 18
    s_add_u32 s50, s50, s49
    s_lshl_b32 s51, s10, 7
    s_add_u32 s50, s50, s51
    s_add_u32 s36, s16, s50
    s_addc_u32 s37, s17, 0
    s_mov_b32 s38, 261760
    s_mov_b32 s39, 0x00020000
    s_mul_i32 s50, s8, 229376
    s_lshl_b32 s51, s9, 7
    s_add_u32 s50, s50, s51
    s_add_u32 s40, s20, s50
    s_addc_u32 s41, s21, 0
    s_sub_u32 s42, 229376, s51
    s_mov_b32 s43, 0x00020000
    s_lshl_b32 s50, s5, 3
    s_add_u32 s50, s50, s6
    s_lshl_b32 s50, s50, 4
    s_add_u32 s50, s50, s8
    s_mul_i32 s50, s50, 71680
    s_add_u32 s50, s50, s48
    s_add_u32 s44, s22, s50
    s_addc_u32 s45, s23, 0
    s_mov_b32 s46, 10240
    s_mov_b32 s47, 0x00020000
    """)
    blocks = []
    for c in range(4):
        for dp in range(4):
            for rg in range(4):
                blocks.append(("K", c * 16384 + rg * 4096 + dp * 128))
    for c in range(4):
        for j in range(4):
            for rg in range(4):
                blocks.append(("V", (128 * j + 32 * c + 8 * rg) * 512))
    for wp in range(8):
        d0 = 64 * (wp & 3) + 32 * (wp >> 2)
        for rg in range(4):
            blocks.append(("W", (d0 + 8 * rg) * 896))
    NB = len(blocks)
    def slot(i): return i if i < 10 else (i - 10) % 8
    def prev(i): return -1 if i < 10 else (i - 10 if i < 18 else i - 8)
    st = {"next": 0, "consumed": -1}
    def dma_list():
        out = []
        while st["next"] < NB and prev(st["next"]) <= st["consumed"]:
            i = st["next"]; st["next"] += 1
            kind, off = blocks[i]
            srd, vo, pol = {"K": (32, 2, cfg.kv_pol), "V": (36, 3, cfg.kv_pol), "W": (40, 4, cfg.w_pol)}[kind]
            out.append((i, [f"s_add_u32 m0, s48, {slot(i) * 1024}",
                            f"s_mov_b32 s49, {off}",
                            f"buffer_load_dwordx4 v{vo}, s[{srd}:{srd+3}], s49 offen{pol} lds"]))
        return out
    def dma_emit(g):
        i, lines = g
        e(lines[0]); e(lines[1]); e(lines[2], tag=f"blk{i}")
    for g in dma_list(): dma_emit(g)
    wq_issue(4)
    e("""
    v_and_b32 v24, 7, v27
    v_lshrrev_b32 v25, 1, v24
    v_and_b32 v25, 1, v25
    v_and_b32 v5, 4, v24
    v_or_b32 v25, v25, v5
    v_lshlrev_b32 v5, 1, v26
    v_xor_b32 v5, v5, v25
    v_lshlrev_b32 v5, 4, v5
    v_lshl_add_u32 v5, v24, 7, v5
    v_lshrrev_b32 v24, 3, v27
    v_lshl_add_u32 v5, v24, 10, v5
    v_add_u32 v5, s48, v5
    v_xor_b32 v6, 16, v5
    """)
    e("""
    v_lshrrev_b32 v24, 2, v27
    v_and_b32 v25, 1, v26
    v_lshl_add_u32 v24, v25, 2, v24
    v_lshrrev_b32 v25, 1, v24
    v_xor_b32 v25, s11, v25
    v_xor_b32 v25, s11, v25
    v_lshlrev_b32 v7, 5, v25
    v_lshl_add_u32 v7, v24, 7, v7
    v_and_b32 v25, 3, v27
    v_lshl_add_u32 v7, v25, 3, v7
    v_lshrrev_b32 v25, 1, v26
    v_lshl_add_u32 v7, v25, 10, v7
    v_add_u32 v7, s48, v7
    s_lshl_b32 s49, s11, 6
    v_xor_b32 v7, s49, v7
    v_xor_b32 v8, 32, v7
    v_xor_b32 v9, 64, v7
    v_xor_b32 v10, 0x60, v7
    """)
    e(f"""
    v_add_u32 v11, {XB}, v0
    v_add_u32 v12, {XB + 40960}, v0
    s_mul_i32 s49, s9, 5120
    v_add_u32 v13, s49, v11
    v_add_u32 v14, s48, v11
    s_xor_b32 s49, s9, 4
    s_mul_i32 s49, s49, 10240
    v_add_u32 v15, s49, v11
    s_mov_b32 s52, 0x05040100
    s_mov_b32 s53, 0x07060302
    s_mov_b32 s54, {f32bits(math.log2(math.e) / 16.0):#x}
    s_mov_b32 s55, 0xffff0000
    """)
    e("s_mul_i32 s49, s11, 28")
    e("v_add_u32 v24, s49, v26")
    e("v_mul_u32_u24 v25, 5120, v27")
    e(f"v_add_u32 v25, {XB}, v25")
    for s in range(7):
        e(f"v_add_u32 v{16+s}, {4*s}, v24")
        e(f"v_xor_b32 v{16+s}, v{16+s}, v27")
        e(f"v_lshl_add_u32 v{16+s}, v{16+s}, 4, v25")
    e.wait(vm="x")
    e("s_barrier")
    stamp()
    wq_issue(5)
    QACC = 32
    def qacc(j, t): return QACC + (j * 5 + t) * 4
    AF = 208
    XF = [240, 244, 248, 252, 28]
    def perms(s):
        base = WQR + (s % 6) * 16
        out = []
        for j in range(4):
            for p in range(4):
                lo = base + 2 * (2 * p) + (j >> 1); hi = base + 2 * (2 * p + 1) + (j >> 1)
                out.append(f"v_perm_b32 v{AF + (s % 2) * 16 + j * 4 + p}, v{hi}, v{lo}, s{52 + (j & 1)}")
        return out
    for t in range(5):
        e(f"ds_read_b128 {vr(XF[t])}, v16 offset:{t*1024}", tag=f"xf0_{t}")
    e.wait(vm="wq0")
    for p in perms(0): e(p)
    for s in range(7):
        fill = []
        if s + 1 < 7:
            fill = perms(s + 1)
        for t in range(5):
            e.wait(lg=f"xf{s}_{t}")
            for j in range(4):
                c = "0" if s == 0 else vr(qacc(j, t))
                e(f"v_mfma_f32_16x16x32_bf16 {vr(qacc(j,t))}, {vr(AF + (s%2)*16 + j*4)}, {vr(XF[t])}, {c}")
                if t == 0 and j == 0:
                    if s == 0: wq_issue(6)
                    if s + 1 < 7: e.wait(vm=f"wq{s+1}")
                elif fill:
                    e(fill.pop(0))
            if s + 1 < 7:
                e(f"ds_read_b128 {vr(XF[t])}, v{16+s+1} offset:{t*1024}", tag=f"xf{s+1}_{t}")
        for f in fill: e(f)
    stamp()
    e("v_lshlrev_b32 v24, 3, v1")
    e("s_xor_b32 s49, s9, 4")
    e("s_mul_i32 s49, s49, 10240")
    e(f"s_add_u32 s49, s49, {XB}")
    e("v_add_u32 v25, s49, v24")
    e(f"s_add_u32 s49, s48, {XB}")
    e("v_add_u32 v24, s49, v24")
    e("s_barrier")
    idx = [(j, t) for t in range(5) for j in range(4)]
    for k in range(0, 20, 2):
        a, b = idx[k], idx[k + 1]
        e(f"ds_write2st64_b64 v25, {vr(qacc(*a)+2, 2)}, {vr(qacc(*b)+2, 2)} offset0:{k} offset1:{k+1}", tag="qxw")
    e.wait(lg="all")
    e("s_barrier")
    RX = 112
    for k in range(0, 20, 2):
        e(f"ds_read2st64_b64 {vr(RX + 2*k)}, v24 offset0:{k} offset1:{k+1}", tag=f"qxr{k}")
    QF = 192
    for t in range(5):
        e.wait(lg=f"qxr{4*t+2}")
        for j in range(4):
            k = 4 * t + j
            e(f"v_add_f32 v{qacc(j,t)}, v{qacc(j,t)}, v{RX+2*k}")
            e(f"v_add_f32 v{qacc(j,t)+1}, v{qacc(j,t)+1}, v{RX+2*k+1}")
        e(f"v_cvt_pk_bf16_f32 v{QF+4*t}, v{qacc(0,t)}, v{qacc(1,t)}")
        e(f"v_cvt_pk_bf16_f32 v{QF+4*t+1}, v{qacc(2,t)}, v{qacc(3,t)}")
        e(f"v_cvt_pk_bf16_f32 v{QF+4*t+2}, v{qacc(0,t)+1}, v{qacc(1,t)+1}")
        e(f"v_cvt_pk_bf16_f32 v{QF+4*t+3}, v{qacc(2,t)+1}, v{qacc(3,t)+1}")
    for t in range(5):
        e(f"ds_write_b128 v14, {vr(QF+4*t)} offset:{t*1024}", tag="qw")
    if cfg.dump == "q":
        dump(e, [QF + 4 * t for t in range(5)])
    e.wait(lg="all")
    e("s_barrier")
    stamp()
    SR = 32
    def sreg(c, t): return SR + (c * 5 + t) * 4
    def acc1(p, u, t): return 112 + p * 40 + (u * 5 + t) * 4
    KF = 192
    QS = [224, 228, 232, 236, 240, 244, 248, 252, 24, 28]
    MX = 16
    def qfrag_addr(dp, ab, t):
        w = dp + 4 * ab
        off = w * 10240 + t * 1024
        return ("v11", off) if off < 40960 else ("v12", off - 40960)
    units = [(G, ab) for G in range(16) for ab in range(2)]
    def kread(G):
        e.wait(vm=f"blk{4*G+3}")
        for u in range(2):
            for ab in range(2):
                e(f"ds_read_b128 {vr(KF + (G%2)*16 + (u*2+ab)*4)}, v{5+ab} offset:{slot(4*G+2*u)*1024}", tag=f"kf{G}")
    def qread(k, t):
        G, ab = units[k]
        a, off = qfrag_addr(G % 4, ab, t)
        e(f"ds_read_b128 {vr(QS[(k%2)*5+t])}, {a} offset:{off}", tag=f"qf{k}_{t}")
    kread(0)
    for t in range(5): qread(0, t)
    for t in range(5): qread(1, t)
    fill = []
    for k, (G, ab) in enumerate(units):
        c, dp = G // 4, G % 4
        p = c % 2
        dmas = []
        if ab == 0 and G + 1 < 16:
            kread(G + 1)
        if ab == 1:
            pass
        for t in range(5):
            e.wait(lg=[f"qf{k}_{t}", f"kf{G}"])
            for u in range(2):
                cc = "0" if (dp == 0 and ab == 0) else vr(acc1(p, u, t))
                e(f"v_mfma_f32_16x16x32_bf16 {vr(acc1(p,u,t))}, {vr(KF + (G%2)*16 + (u*2+ab)*4)}, {vr(QS[(k%2)*5+t])}, {cc}")
                if fill and not (dp == 0 and ab == 0 and t < 4):
                    e(fill.pop(0))
                    if fill: e(fill.pop(0))
            if k + 2 < len(units): qread(k + 2, t)
            if ab == 1 and t == 0 or (k == 0 and t == 0):
                gdone = G + 1 if (ab == 1 and G + 1 < 16) else G
                e.wait(lg=f"kf{gdone}")
                st["consumed"] = 4 * gdone + 3
                dmas = dma_list()
            if dmas: dma_emit(dmas.pop(0))
        for g in dmas: dma_emit(g)
        if dp == 3 and ab == 1:
            for f in fill: e(f)
            fill = []
            for t in range(5):
                for u in range(2):
                    a = acc1(p, u, t)
                    if c == 0 and u == 0:
                        fill.append(f"v_max_f32 v{MX+t}, v{a}, v{a+1}")
                    else:
                        fill.append(f"v_max3_f32 v{MX+t}, v{a}, v{a+1}, v{MX+t}")
                    fill.append(f"v_cvt_pk_bf16_f32 v{sreg(c,t)+2*u}, v{a}, v{a+1}")
                    fill.append(f"v_max3_f32 v{MX+t}, v{a+2}, v{a+3}, v{MX+t}")
                    fill.append(f"v_cvt_pk_bf16_f32 v{sreg(c,t)+2*u+1}, v{a+2}, v{a+3}")
    for f in fill: e(f)
    stamp()
    if cfg.dump == "s":
        dump(e, [SR + 4 * i for i in range(20)])
    def xwave_reduce(R, op, area_off, tagp):
        for t in range(5):
            e(f"v_mov_b32 v{244+t}, v{R+t}")
        for t in range(5):
            e(f"v_permlane32_swap_b32 v{R+t}, v{244+t}")
        for t in range(5):
            e(f"{op} v{R+t}, v{R+t}, v{244+t}")
            e(f"v_mov_b32 v{244+t}, v{R+t}")
        for t in range(5):
            e(f"v_permlane16_swap_b32 v{R+t}, v{244+t}")
        for t in range(5):
            e(f"{op} v{244+t}, v{R+t}, v{244+t}")
        e("v_and_b32 v250, 15, v1")
        e("v_lshlrev_b32 v250, 5, v250")
        e(f"v_add_u32 v251, s48, v250")
        e(f"ds_write_b128 v251, v[244:247] offset:{area_off}", tag=tagp + "w")
        e(f"ds_write_b32 v251, v248 offset:{area_off+16}", tag=tagp + "w")
    def xwave_gather(R, op, area_off, tagp, T):
        e("v_and_b32 v250, 15, v1")
        e("v_lshlrev_b32 v250, 5, v250")
        e("v_add_u32 v251, 40960, v250")
        for w in range(8):
            a, off = ("v250", w * 10240 + area_off) if w < 4 else ("v251", (w - 4) * 10240 + area_off)
            e(f"ds_read_b128 {vr(T + 4*w)}, {a} offset:{off}", tag=f"{tagp}r{w}")
            e(f"ds_read_b32 v{T+32+w}, {a} offset:{off+16}", tag=f"{tagp}r{w}")
        e.wait(lg="all")
        for t in range(5):
            src = [(T + 4 * w + t) if t < 4 else (T + 32 + w) for w in range(8)]
            e(f"{op} v{R+t}, v{src[0]}, v{src[1]}")
            for w in range(2, 8):
                e(f"{op} v{R+t}, v{R+t}, v{src[w]}")
    xwave_reduce(MX, "v_max_f32", 8192, "mx")
    e.wait(lg="all")
    e("s_barrier")
    xwave_gather(MX, "v_max_f32", 8192, "mx", 112)
    for t in range(5):
        e(f"v_cvt_pk_bf16_f32 v{MX+t}, v{MX+t}, v{MX+t}")
        e(f"v_and_b32 v{MX+t}, s55, v{MX+t}")
        e(f"v_mul_f32 v{MX+t}, s54, v{MX+t}")
        e(f"v_sub_f32 v{MX+t}, 0, v{MX+t}")
    LS = 21
    stamp()
    def exp_ops(c):
        out = []
        n = 0
        for t in range(5):
            for r in range(4):
                s = sreg(c, t) + r
                ta = 244 + 2 * (n % 4); tb = ta + 1; n += 1
                out += [f"v_lshlrev_b32 v{ta}, 16, v{s}",
                        f"v_and_b32 v{tb}, s55, v{s}",
                        f"v_fma_f32 v{ta}, v{ta}, s54, v{MX+t}",
                        f"v_fma_f32 v{tb}, v{tb}, s54, v{MX+t}",
                        f"v_exp_f32 v{ta}, v{ta}",
                        f"v_exp_f32 v{tb}, v{tb}"]
                if c == 0 and r == 0:
                    out += [f"v_add_f32 v{LS+t}, v{ta}, v{tb}"]
                else:
                    out += [f"v_add_f32 v{LS+t}, v{LS+t}, v{ta}", f"v_add_f32 v{LS+t}, v{LS+t}, v{tb}"]
                out += [f"v_cvt_pk_bf16_f32 v{s}, v{ta}, v{tb}"]
        return out
    ACC = 112
    def acc2(t4, t): return ACC + (t4 * 5 + t) * 4
    VF = 192; PF = 224
    def aread(gi):
        e.wait(vm=f"blk{4*gi+3}")
        for t4 in range(4):
            for hh in range(2):
                e(f"ds_read_b64_tr_b16 {vr(VF + (gi%2)*16 + t4*4 + hh*2, 2)}, v{7+t4} offset:{slot(4*gi+2*hh)*1024}", tag=f"af{gi}")
    def gemm_kstep(gi, first, bnext, fill, nfill, last_a):
        dmas = []
        if not last_a: aread(gi + 1)
        for t in range(5):
            e.wait(lg=[f"bf{gi}_{t}", f"af{gi}"])
            for t4 in range(4):
                cc = "0" if first else vr(acc2(t4, t))
                e(f"v_mfma_f32_16x16x32_bf16 {vr(acc2(t4,t))}, {vr(VF + (gi%2)*16 + t4*4)}, {vr(PF+4*t)}, {cc}")
                for _ in range(nfill):
                    if fill: e(fill.pop(0))
                if t >= 2 and dmas: dma_emit(dmas.pop(0))
            if bnext: bnext(t)
            if t == 1:
                gdone = gi if last_a else gi + 1
                e.wait(lg=f"af{gdone}")
                st["consumed"] = 4 * gdone + 3
                dmas = dma_list()
        for g in dmas: dma_emit(g)
    e("s_mul_i32 s49, s11, 20480")
    e("v_add_u32 v26, s49, v11")
    def pread(c, j, t):
        gi = 16 + 4 * c + j
        e(f"ds_read_b128 {vr(PF+4*t)}, v26 offset:{(c&1)*40960 + j*5120 + t*1024}", tag=f"bf{gi}_{t}")
    for f in exp_ops(0): e(f)
    aread(16)
    for c in range(4):
        for t in range(5):
            e(f"ds_write_b128 v13, {vr(sreg(c,t))} offset:{(c&1)*40960 + t*1024}", tag="pw")
        e.wait(lg="pw")
        e("s_barrier")
        if c == 3:
            xwave_reduce(LS, "v_add_f32", 9216, "ls")
        for t in range(5): pread(c, 0, t)
        fill = exp_ops(c + 1) if c < 3 else []
        if not cfg.fill_exp:
            pre, fill = fill, []
        for j in range(4):
            gi = 16 + 4 * c + j
            bn = (lambda t, c=c, j=j: pread(c, j + 1, t)) if j < 3 else None
            gemm_kstep(gi, c == 0 and j == 0, bn, fill, 3, last_a=(gi == 31))
        for f in fill: e(f)
        if not cfg.fill_exp:
            for f in pre: e(f)
    stamp()
    e.wait(lg="all")
    e("s_barrier")
    for t4 in (2, 3):
        for t in range(5):
            e(f"ds_write_b128 v15, {vr(acc2(t4,t))} offset:{((t4-2)*5+t)*1024}", tag="oxw")
    e.wait(lg="all")
    e("s_barrier")
    RO = 32
    for k in range(10):
        e(f"ds_read_b128 {vr(RO+4*k)}, v14 offset:{k*1024}", tag=f"oxr{k}")
    xwave_gather(LS, "v_add_f32", 9216, "ls", 72)
    for t in range(5):
        e(f"v_rcp_f32 v{LS+t}, v{LS+t}")
    OFR = 72
    for t in range(5):
        for t4 in range(2):
            a = acc2(t4, t); r = RO + 4 * (t4 * 5 + t)
            for i in range(4):
                e(f"v_add_f32 v{a+i}, v{a+i}, v{r+i}")
            for i in range(4):
                e(f"v_mul_f32 v{a+i}, v{a+i}, v{LS+t}")
            e(f"v_cvt_pk_bf16_f32 v{OFR+4*t+2*t4}, v{a}, v{a+1}")
            e(f"v_cvt_pk_bf16_f32 v{OFR+4*t+2*t4+1}, v{a+2}, v{a+3}")
    for t in range(5):
        e(f"ds_write_b128 v14, {vr(OFR+4*t)} offset:{t*1024}", tag="ow")
    if cfg.dump == "o":
        dump(e, [OFR + 4 * t for t in range(5)])
    e("s_lshl_b32 s49, s11, 6")
    for i in range(4): e(f"v_xor_b32 v{7+i}, s49, v{7+i}")
    aread(32)
    e.wait(lg="all")
    e("s_barrier")
    stamp()
    e("s_cmp_eq_u32 s9, 7")
    e("s_cbranch_scc1 L_main_fin")
    def oread(wp, t):
        off = wp * 10240 + t * 1024
        a, off = ("v11", off) if off < 40960 else ("v12", off - 40960)
        e(f"ds_read_b128 {vr(PF+4*t)}, {a} offset:{off}", tag=f"bf{32+wp}_{t}")
    for t in range(5): oread(0, t)
    for wp in range(8):
        bn = (lambda t, wp=wp: oread(wp + 1, t)) if wp < 7 else None
        gemm_kstep(32 + wp, wp == 0, bn, [], 0, last_a=(wp == 7))
    for t in range(5):
        for half in range(2):
            d = 32 + (t * 2 + half) * 4
            for tt in range(2):
                a = acc2(2 * half + tt, t)
                e(f"v_cvt_pk_bf16_f32 v{d+2*tt}, v{a}, v{a+1}")
                e(f"v_cvt_pk_bf16_f32 v{d+2*tt+1}, v{a+2}, v{a+3}")
            e(f"s_mov_b32 s49, {t*2048 + half*1024}")
            e(f"buffer_store_dwordx4 {vr(d)}, v0, s[44:47], s49 offen{cfg.st_pol}", tag="st")
    e.label("L_main_fin")
    e("s_waitcnt vmcnt(0)")
    if cfg.stamps:
        stamp()
        stamp(True)
        e("s_cmp_lg_u32 s9, 0")
        e("s_cbranch_scc1 L_main_end")
        e("s_waitcnt lgkmcnt(0)")
        n = len(stamp_regs)
        e(f"s_add_u32 s50, s22, {268435456 - (1<<20)}")
        e("s_addc_u32 s51, s23, 0")
        e(f"s_mul_i32 s49, s2, {8*n}")
        e("s_add_u32 s50, s50, s49")
        e("s_addc_u32 s51, s51, 0")
        e("v_mov_b32 v34, 0")
        e("s_mov_b64 exec, 1")
        for i, r in enumerate(stamp_regs):
            e(f"v_mov_b32 v32, s{r}")
            e(f"v_mov_b32 v33, s{r+1}")
            e(f"global_store_dwordx2 v34, v[32:33], s[50:51] offset:{8*i}")
            e("s_waitcnt vmcnt(0)")
    e.label("L_main_end")
    e("s_endpgm")
    cfg.nstamps = len(stamp_regs)
    return e

def dump(e, quads):
    e("s_lshl_b32 s56, s2, 3")
    e("s_add_u32 s56, s56, s9")
    e("s_lshl_b32 s56, s56, 15")
    e("s_add_u32 s56, s56, 0x4000000")
    e("s_add_u32 s56, s22, s56")
    e("s_addc_u32 s57, s23, 0")
    e("v_mov_b32 v255, v0")
    for k, q in enumerate(quads):
        e(f"global_store_dwordx4 v255, {vr(q)}, s[56:57]", tag="dump")
        e("v_add_u32 v255, 1024, v255")
    e.wait(vm="dump")

def gen_reduce(cfg):
    e = Emitter()
    e("""
    s_cmp_ge_u32 s2, 560
    s_cbranch_scc1 L_red_end
    s_memrealtime s[30:31]
    s_load_dwordx2 s[4:5], s[0:1], 80
    s_load_dwordx2 s[6:7], s[0:1], 96
    s_and_b32 s8, s2, 15
    s_lshr_b32 s9, s2, 4
    s_mul_i32 s10, s8, 1146880
    s_lshl_b32 s11, s9, 11
    s_add_u32 s10, s10, s11
    v_lshlrev_b32 v1, 4, v0
    """)
    e.wait(lg="all")
    e(f"""
    s_add_u32 s12, s6, s10
    s_addc_u32 s13, s7, 0
    s_mov_b32 s14, {15*71680 + 2048}
    s_mov_b32 s15, 0x00020000
    """)
    for h in range(16):
        e(f"s_mov_b32 s{20 + (h&1)}, {h*71680}")
        e(f"buffer_load_dwordx4 {vr(16+4*h)}, v1, s[12:15], s{20+(h&1)} offen{cfg.rd_pol}", tag=f"p{h}")
    e("""
    s_mul_i32 s16, s9, 52
    s_lshr_b32 s16, s16, 8
    s_mul_i32 s17, s16, 5
    s_sub_u32 s17, s9, s17
    s_lshr_b32 s18, s8, 3
    s_and_b32 s19, s8, 7
    s_mul_i32 s19, s19, 80
    s_lshl_b32 s17, s17, 4
    s_add_u32 s19, s19, s17
    s_mul_i32 s19, s19, 1792
    s_mul_i32 s18, s18, 896
    s_add_u32 s19, s19, s18
    s_lshl_b32 s16, s16, 7
    s_add_u32 s19, s19, s16
    s_mov_b32 s24, s4
    s_mov_b32 s25, s5
    s_mov_b32 s26, 1146880
    s_mov_b32 s27, 0x00020000
    s_mov_b32 s28, 0xffff0000
    v_and_b32 v2, 15, v0
    v_mul_u32_u24 v2, 1792, v2
    v_lshrrev_b32 v3, 4, v0
    v_and_b32 v4, 3, v3
    v_lshl_add_u32 v2, v4, 3, v2
    v_lshrrev_b32 v3, 2, v3
    v_lshl_add_u32 v2, v3, 6, v2
    """)
    for h in range(16):
        e.wait(vm=f"p{h}")
        for i in range(4):
            s = 16 + 4 * h + i
            if h == 0:
                e(f"v_lshlrev_b32 v{8+2*i}, 16, v{s}")
                e(f"v_and_b32 v{9+2*i}, s28, v{s}")
            else:
                e(f"v_lshlrev_b32 v5, 16, v{s}")
                e(f"v_and_b32 v6, s28, v{s}")
                e(f"v_add_f32 v{8+2*i}, v{8+2*i}, v5")
                e(f"v_add_f32 v{9+2*i}, v{9+2*i}, v6")
    for i in range(4):
        e(f"v_cvt_pk_bf16_f32 v{16+i}, v{8+2*i}, v{9+2*i}")
    e("buffer_store_dwordx2 v[16:17], v2, s[24:27], s19 offen")
    e("buffer_store_dwordx2 v[18:19], v2, s[24:27], s19 offen offset:32")
    if cfg.stamps:
        e("s_waitcnt vmcnt(0)")
        e("s_memrealtime s[32:33]")
        e("s_waitcnt lgkmcnt(0)")
        e(f"s_add_u32 s34, s6, {268435456 - (1<<19)}")
        e("s_addc_u32 s35, s7, 0")
        e("s_lshl_b32 s36, s2, 4")
        e("s_add_u32 s34, s34, s36")
        e("s_addc_u32 s35, s35, 0")
        e("v_mov_b32 v8, s30\nv_mov_b32 v9, s31\nv_mov_b32 v10, s32\nv_mov_b32 v11, s33\nv_mov_b32 v12, 0")
        e("v_cmp_eq_u32 vcc, 0, v0")
        e("s_and_saveexec_b64 s[38:39], vcc")
        e("s_cbranch_execz L_red_st")
        e("global_store_dwordx4 v12, v[8:11], s[34:35]")
        e.label("L_red_st")
    if cfg.dbgstamps:
        e("s_mov_b64 exec, -1")
        e("s_cmp_lg_u32 s2, 0")
        e("s_cbranch_scc1 L_red_end")
        e("v_cmp_gt_u32 vcc, 64, v0")
        e("s_and_saveexec_b64 s[38:39], vcc")
        e("s_cbranch_execz L_red_end")
        e("s_load_dwordx2 s[40:41], s[0:1], 88")
        e(f"s_add_u32 s34, s6, {268435456 - (1<<20)}")
        e("s_addc_u32 s35, s7, 0")
        e("s_waitcnt lgkmcnt(0)")
        e("v_mul_u32_u24 v1, 352, v0")
        e("v_mov_b32 v12, 0")
        for i, j in enumerate([0, 2, 4, 5, 7, 8, 10]):
            for k in range(4):
                e(f"global_load_dword v{16+k}, v1, s[34:35] offset:{88*k + 8*j}")
            e("s_waitcnt vmcnt(0)")
            e("v_max_u32 v20, v16, v17\nv_max_u32 v21, v18, v19\nv_max_u32 v20, v20, v21")
            e("v_min_u32 v22, v16, v17\nv_min_u32 v21, v18, v19\nv_min_u32 v22, v22, v21\nv_not_b32 v22, v22")
            e(f"global_atomic_umax v12, v20, s[40:41] offset:{8*i}")
            e(f"global_atomic_umax v12, v22, s[40:41] offset:{8*i+4}")
        e("v_mov_b32 v20, s30")
        e(f"global_atomic_umax v12, v20, s[40:41] offset:56")
        e("s_waitcnt vmcnt(0)")
    e.label("L_red_end")
    e("s_endpgm")
    return e

def build(cfg, fname):
    km = NAME + "_kernel"; kr = NAME + "_reduce_kernel"
    em = gen_main(cfg); er = gen_reduce(cfg)
    txt = HEADER_COMMENT
    txt += f"; @launch kernel={km} grid=(256,1,1) block=(512,1,1) lds=163840\n"
    txt += f"; @launch kernel={kr} grid=(560,1,1) block=(128,1,1) lds=0\n"
    txt += '.amdgcn_target "amdgcn-amd-amdhsa--gfx950"\n.text\n'
    txt += kernel_start(km) + em.finalize() + kernel_start(kr) + er.finalize()
    txt += '.section .rodata,"a"\n.p2align 6\n' + kernel_desc(km, 256, 100, 256) + ".p2align 6\n" + kernel_desc(kr, 80, 48, 80)
    open(fname, "w").write(txt)
    print(fname, "main nops:", em.nnops, "stamps:", cfg.nstamps, "instrs:", len(em.items))

if __name__ == "__main__":
    cfg = Cfg()
    out = sys.argv[1]
    for kv in sys.argv[2:]:
        k, v = kv.split("=", 1)
        if v in ("True", "False"): v = v == "True"
        elif k.endswith("_pol"): v = (" " + v.replace("+", " ")) if v else ""
        setattr(cfg, k, v)
    build(cfg, out)
```
